```python
import torch

def _softmax(x, axis=-1):
    return torch.softmax(x, dim=axis)
def _gelu(x):
    return torch.nn.functional.gelu(x, approximate="tanh")
def _silu(x):
    return torch.nn.functional.silu(x)
def _sigmoid(x):
    return torch.sigmoid(x)
def _layernorm(x, axis=-1, eps=1e-5):
    m = x.mean(dim=axis, keepdim=True)
    v = x.var(dim=axis, keepdim=True, unbiased=False)
    return (x - m) / torch.sqrt(v + eps)
def _scatter_add(tgt, idx, src, axis=0):
    return tgt.clone().index_add_(axis, idx, src)
def _segment_sum(src, seg, n):
    out = torch.zeros((n,) + src.shape[1:], dtype=src.dtype)
    return out.index_add_(0, seg, src)
def _pad(x, pw):
    flat = tuple(v for pair in reversed(pw) for v in pair)
    return torch.nn.functional.pad(x, flat)

kernel_name = 'concat_heads__mha_block__mha_block__prompt'

def setup_inputs():

    _w = (lambda a: (lambda t: t.to(torch.bfloat16) if t.is_floating_point() else t)(torch.as_tensor(a)))
    def _A_setup():
        B, S, D, H = 1, 2048, 640, 32
        return {
            "x": _w((lambda *s: torch.randn(*s, dtype=torch.bfloat16) * 0.2)(B, S, D)),
            "wqkv": _w((lambda *s: torch.randn(*s, dtype=torch.bfloat16) * 0.2)(D, 3 * D)),
            "wo": _w((lambda *s: torch.randn(*s, dtype=torch.bfloat16) * 0.05)(D, D)),
        }
    _A_in = _A_setup()

    def _B_setup():
        B, S, D, H = 1, 2048, 640, 32
        return {
            "x": _w((lambda *s: torch.randn(*s, dtype=torch.bfloat16) * 0.2)(B, S, D)),
            "wqkv": _w((lambda *s: torch.randn(*s, dtype=torch.bfloat16) * 0.2)(D, 3 * D)),
            "wo": _w((lambda *s: torch.randn(*s, dtype=torch.bfloat16) * 0.05)(D, D)),
        }
    _B_in = _B_setup()

    return {
        "A_x": _A_in["x"],
        "A_wqkv": _A_in["wqkv"],
        "A_wo": _A_in["wo"],
        "B_x": _B_in["x"],
        "B_wqkv": _B_in["wqkv"],
        "B_wo": _B_in["wo"],
    }

def reference(A_x, A_wqkv, A_wo, B_x, B_wqkv, B_wo):
    def _A_ref(x, wqkv, wo):
        B, S, D = x.shape
        H = 32
        Dh = D // H
        qkv = (lambda x, *d: x.permute(*d))((x @ wqkv).reshape(B, S, 3, H, Dh), 2, 0, 3, 1, 4)
        q, k, v = qkv[0], qkv[1], qkv[2]
        scores = torch.einsum("bhqd,bhkd->bhqk", q, k) * (Dh ** -0.5)
        p = _softmax(scores, axis=-1)
        o = torch.einsum("bhqk,bhkd->bhqd", p, v)
        return (lambda x, *d: x.permute(*d))(o, 0, 2, 1, 3).reshape(B, S, D) @ wo

    def _B_ref(x, wqkv, wo):
        B, S, D = x.shape
        H = 32
        Dh = D // H
        qkv = (lambda x, *d: x.permute(*d))((x @ wqkv).reshape(B, S, 3, H, Dh), 2, 0, 3, 1, 4)
        q, k, v = qkv[0], qkv[1], qkv[2]
        scores = torch.einsum("bhqd,bhkd->bhqk", q, k) * (Dh ** -0.5)
        p = _softmax(scores, axis=-1)
        o = torch.einsum("bhqk,bhkd->bhqd", p, v)
        return (lambda x, *d: x.permute(*d))(o, 0, 2, 1, 3).reshape(B, S, D) @ wo

    a = _A_ref(A_x, A_wqkv, A_wo)
    b = _B_ref(B_x, B_wqkv, B_wo)
    return torch.concatenate([a, b], axis=-1)
```

```python
class Asm:
    def __init__(self):
        self.lines=[]
    def __call__(self, s):
        for l in s.split("\n"):
            l=l.strip()
            if not l: continue
            if l.endswith(":") or l.startswith("."):
                self.lines.append(l)
            else:
                self.lines.append("    "+l)
    def c(self, s):
        self.lines.append("    ; "+s)
    def text(self):
        return "\n".join(self.lines)+"\n"

def vr(a,n=1):
    return f"v{a}" if n==1 else f"v[{a}:{a+n-1}]"
def sr(a,n=1):
    return f"s{a}" if n==1 else f"s[{a}:{a+n-1}]"

def kernel_header(a,name):
    a(f".globl {name}\n.p2align 8\n.type {name},@function\n{name}:")

def kernel_desc(name, vgpr, sgpr=96, accum=None):
    if accum is None: accum=(vgpr+3)//4*4
    return f'''.section .rodata,"a"
.p2align 6
.amdhsa_kernel {name}
  .amdhsa_next_free_vgpr {vgpr}
  .amdhsa_next_free_sgpr {sgpr}
  .amdhsa_accum_offset {accum}
  .amdhsa_group_segment_fixed_size 0
  .amdhsa_kernarg_size 72
  .amdhsa_user_sgpr_count 2
  .amdhsa_user_sgpr_kernarg_segment_ptr 1
  .amdhsa_system_sgpr_workgroup_id_x 1
.end_amdhsa_kernel
.text
'''

S=2048; D=640; H=32; DH=20
KV_IMG=163840
KV_OFF=0
Q_IMG=81920
Q_OFF=KV_OFF+64*KV_IMG
O_OFF=Q_OFF+64*Q_IMG
O_BLK=S*D*2
WOT_OFF=O_OFF+2*O_BLK
WOT_IMG=102400
WS_USED=WOT_OFF+16*WOT_IMG
QSCALE=(20**-0.5)*1.4426950408889634

def swap23(i): return (i&~12)|((i&4)<<1)|((i&8)>>1)
def vslot(d): return d if d<4 else (d+6 if d<14 else d-10)
def row_dim(i):
    h=(i>>2)&1; r=(i&3)+4*(i>>3)
    if r<10: return 10*h+r
    if r==10: return 'one'
    return None
```

```python
from asmlib import *
import tables
from gemm import Loop, w_frag_addr, f32bits

F1_OFF=(WS_USED+4095)//4096*4096
F2_OFF=F1_OFF+4096
NAME="concat_heads__mha_block__mha_block__prompt_kernel"
sWS=88; sNon=90; sDbg=92; sWave=94
SPIN=1<<22

class Gen:
    def __init__(g, stamp=False, opt=None):
        g.a=Asm(); g.tail=Asm(); g.stamp=stamp; g.o=dict(opt or {}); g.nst=0
    def RT(g, i):
        if g.stamp:
            g.a(f"s_memrealtime s[96:97]\ns_waitcnt lgkmcnt(0)\nv_mov_b32 v{240+i}, s96")
    def sc(g, key):
        return g.o.get(key," sc1")

    def signal(g, a, off_s, tag):
        a(f"""
        v_mov_b32 v8, s{off_s}
        v_mov_b32 v10, s{sNon}
        v_mov_b32 v11, s{sNon+1}
        s_mov_b64 exec, 1
        global_store_dwordx2 v8, v[10:11], s[{sWS}:{sWS+1}] sc1
        s_mov_b64 exec, -1
        """)
    def poll(g, a, voff, tag):
        a(f"""
        s_mov_b32 s95, {SPIN}
        L_poll_{tag}:
        global_load_dwordx2 v[10:11], v{voff}, s[{sWS}:{sWS+1}] sc1
        s_waitcnt vmcnt(0)
        v_cmp_eq_u64 vcc, s[{sNon}:{sNon+1}], v[10:11]
        s_sub_u32 s95, s95, 1
        s_cmp_eq_u64 vcc, -1
        s_cbranch_scc1 L_polled_{tag}
        s_sleep 1
        s_cmp_lg_u32 s95, 0
        s_cbranch_scc1 L_poll_{tag}
        L_polled_{tag}:
        """)
    def get_nonce(g, a, tag, vN):
        a(f"""
        s_mov_b32 s95, {SPIN}
        L_non_{tag}:
        v_readfirstlane_b32 s{sNon}, v{vN}
        v_readfirstlane_b32 s{sNon+1}, v{vN+1}
        s_sub_u32 s95, s95, 1
        s_nop 2
        s_cmp_lg_u32 s{sNon}, 0
        s_cbranch_scc1 L_nond_{tag}
        s_cmp_eq_u32 s95, 0
        s_cbranch_scc1 L_nond_{tag}
        v_mov_b32 v8, 0
        s_sleep 1
        global_load_dwordx2 v[{vN}:{vN+1}], v8, s[{sDbg}:{sDbg+1}] sc1
        s_waitcnt vmcnt(0)
        s_branch L_non_{tag}
        L_nond_{tag}:
        """)

    def qkv(g):
        a=g.a; name="p1"; st=g.sc("st1")
        NS=3; STG=49152; barpos=g.o.get("barpos",1)
        vLane=1; vXa=[2,3,4,5]; vWa=[6,7]; vT=8
        vXd=[16,17,18,19]; vWd=[20,21]; vN=160
        XF=[[24+16*b,28+16*b] for b in range(4)]; WF=[[32+16*b,36+16*b] for b in range(4)]
        ACC=[[88,104],[120,136]]; vSt=152
        sX=8; sWm=12; sD=16; sW=sWave; sC=21; sStg=84
        sXo=25; sWo=26; sKc=27; sTab=40; sBlk=28; sTb=29; sCb=30; sTyp=31; sM=22; sMask=48; sGo=56; sScale=58; sFl=62
        a(f"""
        s_cmp_ge_u32 s2, 256
        s_cbranch_scc1 L_end
        s_lshr_b32 s33, s2, 3
        s_and_b32 s34, s2, 7
        s_lshr_b32 s{sBlk}, s34, 2
        s_mul_i32 s35, s{sBlk}, 24
        s_add_u32 s36, s0, s35
        s_addc_u32 s37, s1, 0
        s_load_dwordx4 s[4:7], s[36:37], 0
        s_load_dwordx2 s[{sWS}:{sWS+1}], s[0:1], 64
        s_load_dwordx2 s[{sDbg}:{sDbg+1}], s[0:1], 56
        """)
        if g.stamp: a("s_memrealtime s[96:97]")
        a(f"""
        v_and_b32 v{vLane}, 63, v0
        v_lshrrev_b32 v{vT}, 6, v0
        s_and_b32 s34, s34, 3
        v_readfirstlane_b32 s{sW}, v{vT}
        s_mov_b32 s60, s33
        s_mov_b32 s61, s34
        s_cmp_ge_u32 s33, 15
        s_cselect_b32 s35, 15, 0
        s_cselect_b32 s{sTb}, 1, 0
        s_sub_u32 s33, s33, s35
        s_lshl_b32 s35, s34, 1
        s_add_u32 s{sTb}, s{sTb}, s35
        s_mul_i32 s{sTyp}, s33, 52
        s_lshr_b32 s{sTyp}, s{sTyp}, 8
        s_mul_i32 s35, s{sTyp}, 5
        s_sub_u32 s{sCb}, s33, s35
        s_mul_i32 s{sKc}, s34, 5
        s_lshr_b32 s{sKc}, s{sKc}, 1
        """)
        a.c("s33 = column block 0..14, sTb = token block, sTyp 0/1/2 = Q/K/V, sCb = block inside the type, sKc = first k chunk")
        a(f"""
        s_lshl_b32 s{sFl}, s{sBlk}, 4
        s_add_u32 s{sFl}, s{sFl}, s33
        s_lshl_b32 s{sFl}, s{sFl}, 7
        s_lshl_b32 s35, s{sTb}, 3
        s_add_u32 s{sFl}, s{sFl}, s35
        s_add_u32 s{sFl}, s{sFl}, {F1_OFF}
        s_cmp_ge_u32 s{sTyp}, 2
        s_cselect_b32 s35, 5, s{sCb}
        s_lshl_b32 s35, s35, 1
        s_and_b32 s36, s{sW}, 1
        s_add_u32 s35, s35, s36
        s_lshl_b32 s35, s35, 5
        s_getpc_b64 s[36:37]
        L_pc:
        s_add_u32 s36, s36, L_tab-L_pc
        s_addc_u32 s37, s37, 0
        s_add_u32 s36, s36, s35
        s_addc_u32 s37, s37, 0
        s_load_dwordx8 s[{sTab}:{sTab+7}], s[36:37], 0
        s_mul_i32 s{sXo}, s{sTb}, {256*1280}
        s_lshl_b32 s{sWo}, s33, 8
        s_mov_b32 s{sX+2}, {2048*1280}
        s_mov_b32 s{sX+3}, 0x20000
        s_mov_b32 s{sWm+2}, {640*3840}
        s_mov_b32 s{sWm+3}, 0x20000
        """)
        a.c("DMA source offsets")
        a(f"""
        v_lshrrev_b32 v{vT}, 3, v{vLane}
        s_lshl_b32 s35, s{sW}, 5
        v_add_u32 v{vT}, s35, v{vT}
        v_mul_u32_u24 v{vT}, 1280, v{vT}
        v_lshrrev_b32 v{vT+1}, 4, v{vLane}
        v_and_b32 v{vT+2}, 7, v{vLane}
        v_xor_b32 v{vT+2}, v{vT+2}, v{vT+1}
        v_lshl_add_u32 v{vXd[0]}, v{vT+2}, 4, v{vT}
        v_xor_b32 v{vT+2}, 4, v{vT+2}
        v_lshl_add_u32 v{vXd[1]}, v{vT+2}, 4, v{vT}
        v_add_u32 v{vXd[1]}, {8*1280}, v{vXd[1]}
        v_add_u32 v{vXd[2]}, {16*1280}, v{vXd[0]}
        v_add_u32 v{vXd[3]}, {16*1280}, v{vXd[1]}
        s_lshl_b32 s35, s{sW}, 3
        v_add_u32 v{vT}, s35, v{vT+1}
        v_mul_u32_u24 v{vT}, 3840, v{vT}
        v_and_b32 v{vT+2}, 15, v{vLane}
        v_lshlrev_b32 v{vT+1}, 2, v{vT+1}
        v_xor_b32 v{vT+2}, v{vT+2}, v{vT+1}
        v_lshl_add_u32 v{vWd[0]}, v{vT+2}, 4, v{vT}
        v_add_u32 v{vWd[1]}, {4*3840}, v{vWd[0]}
        s_lshl_b32 s{sM}, s{sW}, 12
        s_lshl_b32 s{sM+1}, s{sW}, 11
        s_add_u32 s{sM+1}, s{sM+1}, 32768
        s_mov_b32 s{sStg}, 0
        s_waitcnt lgkmcnt(0)
        s_mov_b32 s{sX}, s4
        s_mov_b32 s{sX+1}, s5
        s_mov_b32 s{sWm}, s6
        s_mov_b32 s{sWm+1}, s7
        """)
        if g.stamp: a("v_mov_b32 v240, s96")
        a(f"s_cmp_ge_u32 s60, 30\ns_cbranch_scc1 L_wot")
        def dma(stg=None, groups=False):
            stn=f"s{sStg+3}" if stg is None else str(stg*STG)
            G=[[f"s_lshl_b32 s34, s{sKc}, 7", f"s_add_u32 s34, s34, s{sXo}", f"s_mul_i32 s35, s{sKc}, {64*3840}",
                f"s_add_u32 s35, s35, s{sWo}", f"s_add_u32 s36, s{sM}, {stn}", f"s_add_u32 s37, s{sM+1}, {stn}",
                f"s_add_u32 s{sKc}, s{sKc}, 1", f"s_cmp_eq_u32 s{sKc}, 10", f"s_cselect_b32 s{sKc}, 0, s{sKc}"]]
            for k,i in [("x",0),("w",0),("x",1),("w",1),("x",2),("x",3)]:
                q=[f"s_add_u32 m0, s{36 if k=='x' else 37}, {i*1024}", "s_nop 0"]
                if k=="x": q.append(f"buffer_load_dwordx4 v{vXd[i]}, s[{sX}:{sX+3}], s34 offen lds")
                else: q.append(f"buffer_load_dwordx4 v{vWd[i]}, s[{sWm}:{sWm+3}], s35 offen lds")
                G.append(q)
            if groups: return G
            for q in G:
                for l in q: a(l)
        dma(0)
        a.c("fragment addresses")
        a(f"""
        v_and_b32 v{vT}, 31, v{vLane}
        s_lshr_b32 s35, s{sW}, 1
        s_lshl_b32 s35, s35, 13
        v_lshlrev_b32 v{vT+1}, 7, v{vT}
        v_add_u32 v{vT+1}, s35, v{vT+1}
        v_bfe_u32 v{vT+2}, v{vT}, 1, 3
        v_lshrrev_b32 v{vT+3}, 5, v{vLane}
        v_xor_b32 v{vT+2}, v{vT+2}, v{vT+3}
        v_lshl_add_u32 v{vXa[0]}, v{vT+2}, 4, v{vT+1}
        v_xor_b32 v{vXa[1]}, 32, v{vXa[0]}
        v_xor_b32 v{vXa[2]}, 64, v{vXa[0]}
        v_xor_b32 v{vXa[3]}, 96, v{vXa[0]}
        """)
        w_frag_addr(a,vWa,vLane,vT,sTab,32768)
        for tt in range(2):
            for ct in range(2):
                for j in range(16): a(f"v_mov_b32 v{ACC[tt][ct]+j}, 0")
        dma(1)
        lp=Loop(a,name,NS,STG,ACC,XF,WF,vXa,vWa,lambda tt,ks:tt*4096,6,dma,sC,sStg,True)
        a(f"s_mov_b32 s{sC}, 0\ns_cmp_eq_u32 s{sTyp}, 2\ns_cbranch_scc1 L_p1_v")
        a.c("destination: s[sD] = ws + base(type) + blk*32*IMG ; s34 = IMG ; sGo = group offset")
        a(f"""
        s_lshl_b32 s34, {Q_IMG}, s{sTyp}
        s_lshl_b32 s35, 5120, s{sTyp}
        s_cmp_eq_u32 s{sTyp}, 0
        s_cselect_b32 s36, {Q_OFF}, {KV_OFF}
        s_mov_b32 s{sScale}, {f32bits(QSCALE):#x}
        s_mov_b32 s{sScale+1}, {f32bits(QSCALE):#x}
        s_lshl_b32 s{sD+2}, s34, 5
        s_mov_b32 s{sD+3}, 0x20000
        s_mul_i32 s37, s{sD+2}, s{sBlk}
        s_add_u32 s36, s36, s37
        s_add_u32 s{sD}, s{sWS}, s36
        s_addc_u32 s{sD+1}, s{sWS+1}, 0
        s_lshl_b32 s36, s{sTb}, 1
        s_lshr_b32 s37, s{sW}, 2
        s_add_u32 s36, s36, s37
        s_mul_i32 s{sGo}, s35, s36
        s_bfe_u32 s36, s{sW}, 0x10001
        s_lshl_b32 s37, s36, 9
        s_add_u32 s37, s37, 4096
        s_lshl_b32 s36, s36, 11
        v_and_b32 v{vT}, 0x13, v{vLane}
        v_bfe_u32 v{vT+1}, v{vLane}, 2, 1
        v_lshl_or_b32 v{vT}, v{vT+1}, 3, v{vT}
        v_bfe_u32 v{vT+1}, v{vLane}, 3, 1
        v_lshl_or_b32 v{vT}, v{vT+1}, 2, v{vT}
        v_lshlrev_b32 v{vT}, 4, v{vT}
        v_lshrrev_b32 v{vT+1}, 5, v{vLane}
        v_lshlrev_b32 v{vT+1}, 4, v{vT+1}
        """)
        for ct in range(2):
            for qp in range(2):
                sd=sTab+4*ct+2+qp; n=2*ct+qp; mk=f"s[{sMask+2*n}:{sMask+2*n+1}]"
                a(f"""
                v_lshrrev_b32 v{vT+2}, v{vT+1}, s{sd}
                v_and_b32 v{vT+3}, 31, v{vT+2}
                v_mul_lo_u32 v{vT+3}, v{vT+3}, s34
                v_bfe_u32 v{vT+6}, v{vT+2}, 8, 5
                v_mul_lo_u32 v{vSt+2*n+1}, v{vT+6}, s34
                v_bfe_u32 v{vT+5}, v{vT+2}, 6, 1
                v_lshl_add_u32 v{vT+5}, v{vT+5}, 9, s36
                v_and_b32 v{vT+2}, 32, v{vT+2}
                v_cmp_ne_u32 {mk}, 0, v{vT+2}
                v_mov_b32 v{vT+6}, s37
                v_add_u32 v{vT+7}, 1024, v{vT+5}
                v_cndmask_b32 v{vT+5}, v{vT+5}, v{vT+6}, {mk}
                v_cndmask_b32 v{vT+7}, v{vT+7}, v{vT+6}, {mk}
                v_add3_u32 v{vSt+2*n}, v{vT+3}, v{vT+5}, v{vT}
                v_add3_u32 v{vSt+2*n+1}, v{vSt+2*n+1}, v{vT+7}, v{vT}
                """)
        def start():
            a(f"s_mov_b32 s{sStg+3}, {(NS-1)*STG}\ns_waitcnt vmcnt({6*(NS-2)})\ns_barrier")
            g.RT(1)
            lp.prologue_reads()
        def nonce_load():
            a(f"v_mov_b32 v8, 0\nglobal_load_dwordx2 v[{vN}:{vN+1}], v8, s[{sDbg}:{sDbg+1}] sc1")
        start()
        lp.emit("qk",False,barpos)
        nonce_load()
        g.RT(2)
        a(f"s_cmp_lg_u32 s{sTyp}, 0\ns_nop 7\ns_cbranch_scc1 L_p1_nsc")
        for ct in range(2):
            for tt in range(2):
                b=ACC[tt][ct]
                for j in range(0,16,2): a(f"v_pk_mul_f32 {vr(b+j,2)}, {vr(b+j,2)}, s[{sScale}:{sScale+1}]")
        a(f"L_p1_nsc:")
        P=24
        for ct in range(2):
            for qp in range(2):
                n=2*ct+qp; sg=P+8*n; mk=f"s[{sMask+2*n}:{sMask+2*n+1}]"
                b0=ACC[0][ct]+8*qp; b1=ACC[1][ct]+8*qp
                for k in range(2):
                    a(f"v_cvt_pk_bf16_f32 v{sg+k}, v{b0+2*k}, v{b0+2*k+1}")
                    a(f"v_cvt_pk_bf16_f32 v{b0+k}, v{b0+4+2*k}, v{b0+5+2*k}")
                for k in range(2):
                    a(f"v_cvt_pk_bf16_f32 v{b0+2+k}, v{b1+2*k}, v{b1+2*k+1}")
                    a(f"v_cvt_pk_bf16_f32 v{sg+6+k}, v{b1+4+2*k}, v{b1+5+2*k}")
                for k in range(2):
                    a(f"v_cndmask_b32 v{sg+2+k}, v{b0+k}, v{b0+2+k}, {mk}")
                    a(f"v_cndmask_b32 v{sg+4+k}, v{b0+2+k}, v{b0+k}, {mk}")
                a(f"buffer_store_dwordx4 {vr(sg,4)}, v{vSt+2*n}, s[{sD}:{sD+3}], s{sGo} offen{st}")
                a(f"buffer_store_dwordx4 {vr(sg+4,4)}, v{vSt+2*n+1}, s[{sD}:{sD+3}], s{sGo} offen{st}")
        a(f"s_branch L_p1_done")
        a(f"L_p1_v:")
        a(f"""
        s_mov_b32 s{sD+2}, {32*KV_IMG}
        s_mov_b32 s{sD+3}, 0x20000
        s_mul_i32 s37, s{sBlk}, {32*KV_IMG}
        s_add_u32 s{sD}, s{sWS}, s37
        s_addc_u32 s{sD+1}, s{sWS+1}, 0
        s_lshl_b32 s36, s{sTb}, 1
        s_lshr_b32 s37, s{sW}, 2
        s_add_u32 s36, s36, s37
        s_mul_i32 s35, s36, 10240
        s_bfe_u32 s36, s{sW}, 0x10001
        s_mul_i32 s36, s36, 2560
        s_add_u32 s35, s35, s36
        s_add_u32 s{sGo}, s35, 5120
        s_lshl_b32 s36, s{sCb}, 7
        s_and_b32 s37, s{sW}, 1
        s_lshl_b32 s37, s37, 6
        s_add_u32 s36, s36, s37
        s_mov_b32 s34, {KV_IMG}
        v_and_b32 v{vT}, 31, v{vLane}
        v_add_u32 v{vT}, s36, v{vT}
        v_lshrrev_b32 v{vT+1}, 5, v{vLane}
        v_mul_u32_u24 v{vT+1}, 320, v{vT+1}
        """)
        for ct in range(2):
            a(f"""
            v_mul_u32_u24 v{vT+2}, 3277, v{vT}
            v_lshrrev_b32 v{vT+2}, 16, v{vT+2}
            v_mul_u32_u24 v{vT+3}, 20, v{vT+2}
            v_sub_u32 v{vT+3}, v{vT}, v{vT+3}
            v_mul_lo_u32 v{vT+2}, v{vT+2}, s34
            v_add_u32 v{vT+4}, 6, v{vT+3}
            v_cmp_gt_u32 vcc, 4, v{vT+3}
            v_subrev_u32 v{vT+5}, 10, v{vT+3}
            v_add_u32 v{vT}, 32, v{vT}
            v_cndmask_b32 v{vT+4}, v{vT+4}, v{vT+3}, vcc
            v_cmp_lt_u32 vcc, 13, v{vT+3}
            v_add_u32 v{vT+2}, v{vT+2}, v{vT+1}
            s_nop 0
            v_cndmask_b32 v{vT+4}, v{vT+4}, v{vT+5}, vcc
            v_lshl_add_u32 v{vSt+ct}, v{vT+4}, 4, v{vT+2}
            """)
        start()
        lp.emit("vv",True,barpos)
        nonce_load()
        g.RT(2)
        a("s_nop 7")
        for tt,ct in ((0,0),(0,1),(1,1),(1,0)):
            b=ACC[tt][ct]
            for j in range(8): a(f"v_cvt_pk_bf16_f32 v{b+j}, v{b+2*j}, v{b+2*j+1}")
            for s in range(2):
                a(f"buffer_store_dwordx4 {vr(b+4*s,4)}, v{vSt+ct}, s[{sD}:{sD+3}], s{sGo} offen offset:{tt*1280+s*640}{st}")
        a(f"L_p1_done:")
        a.c("publish: every wave's stores are done, then one lane writes the tag of this launch")
        a("s_waitcnt vmcnt(0)")
        g.RT(3)
        a(f"s_barrier\ns_cmp_lg_u32 s{sW}, 0\ns_cbranch_scc1 L_p1_ns")
        g.get_nonce(a,"a",vN)
        g.signal(a,sFl,"1")
        a("L_p1_ns:")
        t=g.tail
        t("L_wot:")
        vWd2=[[16+u for u in range(5)],[21+u for u in range(5)]]; vWa2=26; vL16=27; F=28
        t.c("workgroup 255 picks the tag of this launch")
        t(f"""
        s_cmp_lg_u32 s2, 255
        s_cbranch_scc1 L_wot_nt
        s_cmp_lg_u32 s{sW}, 0
        s_cbranch_scc1 L_wot_nt
        s_memrealtime s[34:35]
        s_waitcnt lgkmcnt(0)
        s_or_b32 s34, s34, 1
        v_mov_b32 v8, 0
        v_mov_b32 v10, s34
        v_mov_b32 v11, s35
        s_mov_b64 exec, 1
        global_store_dwordx2 v8, v[10:11], s[{sDbg}:{sDbg+1}] sc1
        s_mov_b64 exec, -1
        L_wot_nt:
        s_mul_i32 s35, s{sBlk}, 24
        s_add_u32 s36, s0, s35
        s_addc_u32 s37, s1, 0
        s_load_dwordx2 s[6:7], s[36:37], 16
        s_lshl_b32 s33, s61, 1
        s_add_u32 s33, s33, s60
        s_sub_u32 s33, s33, 30
        s_mul_i32 s26, s33, 160
        s_lshl_b32 s{sFl}, s{sBlk}, 11
        s_lshl_b32 s34, s33, 3
        s_add_u32 s{sFl}, s{sFl}, s34
        s_add_u32 s{sFl}, s{sFl}, {F1_OFF+15*128}
        s_lshl_b32 s34, s{sBlk}, 3
        s_add_u32 s34, s34, s33
        s_mul_i32 s34, s34, {WOT_IMG}
        s_add_u32 s34, s34, {WOT_OFF}
        s_add_u32 s{sD}, s{sWS}, s34
        s_addc_u32 s{sD+1}, s{sWS+1}, 0
        s_mov_b32 s{sD+2}, {WOT_IMG}
        s_mov_b32 s{sD+3}, 0x20000
        s_mov_b32 s{sWm+2}, {640*1280}
        s_mov_b32 s{sWm+3}, 0x20000
        v_lshlrev_b32 v{vL16}, 4, v{vLane}
        """)
        for u in range(5):
            t(f"""
            v_add_u32 v{vT+2}, {64*u}, v{vLane}
            v_mul_u32_u24 v{vT+3}, 6554, v{vT+2}
            v_lshrrev_b32 v{vT+3}, 16, v{vT+3}
            v_mul_u32_u24 v{vT+4}, 10, v{vT+3}
            v_sub_u32 v{vT+2}, v{vT+2}, v{vT+4}
            v_lshlrev_b32 v{vT+2}, 4, v{vT+2}
            v_lshrrev_b32 v{vT+4}, 4, v{vT+3}
            v_bfe_u32 v{vT+5}, v{vT+3}, 2, 1
            v_mul_u32_u24 v{vT+5}, 10, v{vT+5}
            v_bfe_u32 v{vT+6}, v{vT+3}, 3, 1
            v_and_b32 v{vT+7}, 3, v{vT+3}
            v_lshl_add_u32 v{vT+1}, v{vT+6}, 2, v{vT+7}
            v_mad_u32_u24 v{vT+7}, v{vT+4}, 20, v{vT+5}
            v_add_u32 v{vT+7}, v{vT+7}, v{vT+1}
            v_mul_u32_u24 v{vT+7}, 1280, v{vT+7}
            v_add_u32 v{vWd2[0][u]}, v{vT+7}, v{vT+2}
            v_mul_u32_u24 v{vT+4}, 80, v{vT+4}
            v_add_u32 v{vT+4}, v{vT+4}, v{vT+5}
            v_mad_u32_u24 v{vT+4}, v{vT+6}, 40, v{vT+4}
            v_bfe_u32 v{vT+5}, v{vT+3}, 1, 1
            v_mad_u32_u24 v{vT+4}, v{vT+5}, 20, v{vT+4}
            v_and_b32 v{vT+5}, 1, v{vT+3}
            v_add3_u32 v{vT+4}, v{vT+4}, v{vT+5}, 8
            v_mul_u32_u24 v{vT+4}, 1280, v{vT+4}
            v_add_u32 v{vWd2[1][u]}, v{vT+4}, v{vT+2}
            """)
        t(f"""
        v_lshrrev_b32 v{vT}, 4, v{vLane}
        v_lshrrev_b32 v{vT+2}, 1, v{vT}
        v_lshlrev_b32 v{vT+2}, 4, v{vT+2}
        v_and_b32 v{vT+3}, 1, v{vT}
        v_lshl_add_u32 v{vT+2}, v{vT+3}, 2, v{vT+2}
        v_bfe_u32 v{vT+3}, v{vLane}, 2, 2
        v_add_u32 v{vT+2}, v{vT+2}, v{vT+3}
        v_mul_u32_u24 v{vT+2}, 160, v{vT+2}
        v_and_b32 v{vT+3}, 3, v{vLane}
        v_lshl_add_u32 v{vWa2}, v{vT+3}, 3, v{vT+2}
        s_mul_i32 s27, s{sW}, 5120
        v_add_u32 v{vWa2}, s27, v{vWa2}
        s_mul_i32 s34, s{sW}, {40*1280}
        s_add_u32 s34, s34, s26
        s_add_u32 s35, s34, {320*1280}
        s_mul_i32 s36, s{sW}, {160*1280}
        s_add_u32 s36, s36, s26
        s_waitcnt lgkmcnt(0)
        s_mov_b32 s{sWm}, s6
        s_mov_b32 s{sWm+1}, s7
        """)
        def stage(r):
            for u in range(5):
                t(f"s_add_u32 m0, s27, {r*40960+u*1024}\ns_nop 0")
                t(f"buffer_load_dwordx4 v{vWd2[r==2][u]}, s[{sWm}:{sWm+3}], s{34+r} offen lds")
        def out(r):
            for c in range(5):
                for sec in range(2): t(f"ds_read_b64_tr_b16 {vr(F+20*r+4*c+2*sec,2)}, v{vWa2} offset:{sec*1280+c*32}")
            t(f"v_add_u32 v{vWa2}, 40960, v{vWa2}\ns_add_u32 s37, s27, {r*40960}\ns_add_u32 s33, s37, 4096\ns_waitcnt lgkmcnt(0)")
            for c in range(5):
                t(f"buffer_store_dwordx4 {vr(F+20*r+4*c,4)}, v{vL16}, s[{sD}:{sD+3}], {'s37' if c<4 else 's33'} offen offset:{(c&3)*1024} sc1")
        stage(0); stage(1)
        t(f"s_cmp_ge_u32 s{sW}, 4\ns_cbranch_scc1 L_wot_2")
        stage(2)
        t("s_waitcnt vmcnt(0)")
        out(0); out(1); out(2)
        t(f"s_branch L_wot_e\nL_wot_2:\ns_waitcnt vmcnt(0)")
        out(0); out(1)
        t(f"L_wot_e:\nv_mov_b32 v8, 0\nglobal_load_dwordx2 v[{vN}:{vN+1}], v8, s[{sDbg}:{sDbg+1}] sc1")
        if g.stamp: t("v_mov_b32 v241, v240\nv_mov_b32 v242, v240")
        t("s_branch L_p1_done")

    def attn(g):
        a=g.a; name="p2"; o=g.o
        unroll=o.get("unroll",3); prio=o.get("prio",(84,84)); npro=4; ld=g.sc("ld2"); st=g.sc("st2")
        vLane=1; vKn=2; vVn=3; vFl=4; vIdx=5; vKb=6; vVb=7; vT=8
        Q1=[16,20]; Q2e=[24,26]; Q2o=[28,30]
        K1=[32,36,40,44]; K2=48
        V=[[52+8*t+4*s for s in range(2)] for t in range(4)]
        SB=[84+16*i for i in range(4)]
        O=[148,164]
        sKV=8; sQ=12; sO=16; sW=sWave; sG=21; sVM=22; sDma=39
        vmask=0
        for i in range(32):
            if isinstance(row_dim(i),int): vmask|=1<<i
        a(f"""
        s_and_b32 s26, s2, 7
        s_lshr_b32 s27, s2, 3
        s_lshr_b32 s28, s26, 2
        s_and_b32 s29, s26, 3
        s_lshl_b32 s29, s29, 3
        s_and_b32 s30, s27, 7
        s_add_u32 s29, s29, s30
        s_lshr_b32 s30, s27, 3
        s_lshl_b32 s31, s28, 5
        s_add_u32 s31, s31, s29
        """)
        a.c("s28=blk s29=head s30=qb s31=p")
        a(f"""
        s_mul_i32 s32, s31, {KV_IMG}
        s_mul_i32 s33, s31, {Q_IMG}
        s_add_u32 s33, s33, {Q_OFF}
        s_mul_i32 s34, s28, {O_BLK}
        s_add_u32 s34, s34, {O_OFF}
        s_mov_b32 s{sKV+2}, {KV_IMG}
        s_mov_b32 s{sKV+3}, 0x20000
        s_mov_b32 s{sQ+2}, {Q_IMG}
        s_mov_b32 s{sQ+3}, 0x20000
        s_mov_b32 s{sO+2}, {O_BLK}
        s_mov_b32 s{sO+3}, 0x20000
        s_add_u32 s{sKV}, s{sWS}, s32
        s_addc_u32 s{sKV+1}, s{sWS+1}, 0
        s_add_u32 s{sQ}, s{sWS}, s33
        s_addc_u32 s{sQ+1}, s{sWS+1}, 0
        s_add_u32 s{sO}, s{sWS}, s34
        s_addc_u32 s{sO+1}, s{sWS+1}, 0
        v_lshlrev_b32 v{vKb}, 4, v{vLane}
        s_lshl_b32 s35, s30, 2
        s_lshr_b32 s36, s{sW}, 1
        s_add_u32 s35, s35, s36
        s_mul_i32 s35, s35, 5120
        s_and_b32 s36, s{sW}, 1
        s_lshl_b32 s37, s36, 11
        s_add_u32 s37, s37, s35
        s_lshl_b32 s38, s36, 9
        s_add_u32 s38, s38, s35
        s_add_u32 s38, s38, 4096
        s_lshl_b32 s{sDma}, s{sW}, 10
        s_mov_b32 m0, s{sDma}
        """)
        a.c("flags to wait for: lane group l>>3 = K(a) K(b) V(a) V(b) Q(a) Q(b) Wo Wo, l&7 = token block")
        a(f"""
        s_mul_i32 s40, s29, 5
        s_add_u32 s41, s40, 4
        s_lshr_b32 s40, s40, 5
        s_lshr_b32 s41, s41, 5
        v_bfe_u32 v{vT}, v{vLane}, 3, 1
        v_mov_b32 v{vT+1}, s40
        v_mov_b32 v{vT+2}, s41
        v_cmp_eq_u32 vcc, 1, v{vT}
        v_lshrrev_b32 v{vT+3}, 4, v{vLane}
        v_mov_b32 v{vT+4}, 0x0f000a05
        v_cndmask_b32 v{vT+1}, v{vT+1}, v{vT+2}, vcc
        v_lshlrev_b32 v{vT}, 3, v{vT+3}
        v_lshrrev_b32 v{vT+4}, v{vT}, v{vT+4}
        v_and_b32 v{vT+4}, 15, v{vT+4}
        v_cmp_eq_u32 vcc, 3, v{vT+3}
        v_add_u32 v{vT+1}, v{vT+1}, v{vT+4}
        s_lshl_b32 s40, s28, 11
        s_add_u32 s40, s40, {F1_OFF}
        v_cndmask_b32 v{vT+1}, v{vT+1}, v{vT+4}, vcc
        v_lshlrev_b32 v{vT+1}, 7, v{vT+1}
        v_and_b32 v{vT}, 7, v{vLane}
        v_lshl_add_u32 v{vT+1}, v{vT}, 3, v{vT+1}
        v_add_u32 v{vFl}, s40, v{vT+1}
        """)
        a.c("per-lane V address: h*320 + slot(dim(row))*16 + 5120")
        a(f"""
        v_and_b32 v{vT}, 31, v{vLane}
        v_bfe_u32 v{vT+1}, v{vT}, 2, 1
        v_and_b32 v{vT+2}, 3, v{vT}
        v_lshrrev_b32 v{vT+3}, 3, v{vT}
        v_lshl_add_u32 v{vT+2}, v{vT+3}, 2, v{vT+2}
        v_mul_u32_u24 v{vT+1}, 10, v{vT+1}
        v_add_u32 v{vT+1}, v{vT+1}, v{vT+2}
        v_add_u32 v{vT+3}, 6, v{vT+1}
        v_cmp_gt_u32 vcc, 4, v{vT+1}
        s_mov_b32 s{sVM}, {vmask:#x}
        s_mov_b32 s{sVM+1}, {vmask:#x}
        v_cndmask_b32 v{vT+3}, v{vT+3}, v{vT+1}, vcc
        v_cmp_lt_u32 vcc, 13, v{vT+1}
        v_subrev_u32 v{vVb}, 10, v{vT+1}
        s_nop 0
        v_cndmask_b32 v{vT+3}, v{vT+3}, v{vVb}, vcc
        v_lshlrev_b32 v{vT+3}, 4, v{vT+3}
        v_lshrrev_b32 v{vVb}, 5, v{vLane}
        v_mul_u32_u24 v{vVb}, 320, v{vVb}
        v_add_u32 v{vVb}, v{vVb}, v{vT+3}
        v_add_u32 v{vVb}, 5120, v{vVb}
        v_cmp_eq_u32 vcc, 10, v{vT+2}
        v_mov_b32 v{vIdx}, 0xdddddddd
        v_mov_b32 v{vT+3}, 0x3f803f80
        v_cndmask_b32 v{vT+3}, 0, v{vT+3}, vcc
        v_lshlrev_b32 v{vT+1}, 4, v{vT}
        """)
        for t in range(4):
            for s in range(2):
                for j in range(4): a(f"v_mov_b32 v{V[t][s]+j}, v{vT+3}")
        for q in range(2):
            for j in range(16): a(f"v_mov_b32 v{O[q]+j}, 0")
        for j in range(16): a(f"v_mov_b32 v{SB[3]+j}, 0")
        a(f"""
        v_mov_b32 v{vKn}, v{vKb}
        v_mov_b32 v{vVn}, v{vVb}
        s_cmp_lg_u32 s{sW}, 0
        s_cbranch_scc1 L_p2_np
        """)
        g.poll(a,vFl,"1")
        a("L_p2_np:\ns_barrier")
        g.RT(4)
        def dma():
            return [f"buffer_load_dwordx4 v{vKb}, s[{sKV}:{sKV+3}], s{sDma} offen{ld} lds",
                    f"s_add_u32 s{sDma}, s{sDma}, 8192", f"s_mov_b32 m0, s{sDma}"]
        for l in dma(): a(l)
        a(f"""
        buffer_load_dwordx4 {vr(Q1[0],4)}, v{vKb}, s[{sQ}:{sQ+3}], s37 offen{ld}
        buffer_load_dwordx4 {vr(12,4)}, v{vT+1}, s[{sQ}:{sQ+3}], s38 offen{ld}
        """)
        for l in dma(): a(l)
        a(f"buffer_load_dwordx4 {vr(Q1[1],4)}, v{vKb}, s[{sQ}:{sQ+3}], s37 offen offset:1024{ld}")
        for m in range(2,npro):
            for l in dma(): a(l)
            a("s_nop 0")
        a(f"v_cmp_gt_u32 vcc, 32, v{vLane}\ns_waitcnt vmcnt({npro-2})\ns_barrier")
        for t in range(4): a(f"ds_read_b128 {vr(K1[t],4)}, v{vKb} offset:{t*1024}")
        a(f"ds_read_b128 {vr(K2,4)}, v{vKb} offset:4096")
        a(f"s_mov_b64 exec, s[{sVM}:{sVM+1}]")
        for t in range(3):
            for s in range(2): a(f"ds_read_b128 {vr(V[t][s],4)}, v{vVb} offset:{t*1280+s*640}")
        a(f"s_mov_b64 exec, -1\ns_mov_b32 s{sG}, 0")
        a.c("Q2 variants: e = extras in lanes 0-31 only, o = in lanes 32-63 only")
        for q in range(2):
            for j in range(2):
                a(f"v_cndmask_b32 v{Q2e[q]+j}, 0, v{12+2*q+j}, vcc")
                a(f"v_cndmask_b32_e64 v{Q2o[q]+j}, v{12+2*q+j}, 0, vcc")
        a("s_waitcnt lgkmcnt(6)")
        def qk1(n):
            kt=(n>>1)&3; qt=n&1
            return f"v_mfma_f32_32x32x16_bf16 {vr(SB[n%4],16)}, {vr(K1[kt],4)}, {vr(Q1[qt],4)}, 0"
        def qk2(n):
            kt=(n>>1)&3; qt=n&1
            q2=(Q2e if kt<2 else Q2o)[qt]
            return f"v_mfma_f32_32x32x8_bf16 {vr(SB[n%4],16)}, {vr(K2+2*(kt&1),2)}, {vr(q2,2)}, {vr(SB[n%4],16)}"
        def pv(n,s):
            kt=(n>>1)&3; qt=n&1
            return f"v_smfmac_f32_32x32x32_bf16 {vr(O[qt],16)}, {vr(V[kt][s],4)}, {vr(SB[n%4]+8*s,8)}, v{vIdx}"
        a(qk1(0)); a(qk2(0))
        a.c("groups 1,2 landed for every wave; own group-0 reads done")
        a(f"s_waitcnt vmcnt(0) lgkmcnt(0)\ns_barrier")
        a("s_nop 7\ns_nop 1")
        g.RT(5)
        def group_body(u, last, dmas):
            body=[]
            def ex(n,j0):
                body.append(("q",4*n+j0//4))
                for j in range(j0,j0+4): body.append(("i",f"v_exp_f32 v{SB[n%4]+j}, v{SB[n%4]+j}"))
            nx=(u+1)*10240; cu=u*10240
            for n in range(8):
                m=n+1; kt=(m>>1)&3
                A=[];B=[];C=[]
                if m&1 and m<8: A.append(("read",f"K1{kt}",f"ds_read_b128 {vr(K1[kt],4)}, v{vKn} offset:{nx+kt*1024}",True))
                if m==5: B.append(("read","K20",f"ds_read_b64 {vr(K2,2)}, v{vKn} offset:{nx+4096}",True))
                if m==7: B.append(("read","K21",f"ds_read_b64 {vr(K2+2,2)}, v{vKn} offset:{nx+4096+8}",True))
                for k in range(dmas[n]):
                    for l in dma(): B.append(("i",l))
                    if k+1<dmas[n]: B.append(("i","s_nop 0"))
                pn=(n-1)%8; pk=pn>>1
                if pn&1 and not (last and pk!=3):
                    off=cu if pk==3 else nx
                    C.append(("i",f"s_mov_b64 exec, s[{sVM}:{sVM+1}]"))
                    for s in range(2): C.append(("read",f"V{pk}{s}",f"ds_read_b128 {vr(V[pk][s],4)}, v{vVn} offset:{off+pk*1280+s*640}",pk!=3))
                    C.append(("i","s_mov_b64 exec, -1"))
                body.append(("slot",n))
                if not (last and m==8):
                    body.append(("use",f"K1{kt}")); body.append(("i",qk1(m)))
                body+=A
                ex(n,0)
                if not (last and m==8):
                    body.append(("use",f"K2{kt&1}")); body.append(("i",qk2(m)))
                body+=B
                ex(n,4)
                body.append(("use",f"V{pk}0")); body.append(("i",pv(pn,0)))
                ex(n,8)
                body.append(("use",f"V{pk}1")); body.append(("i",pv(pn,1)))
                body+=C
                ex(n,12)
            return body
        gb=group_body(0,False,[0]*8)
        def need(nm,at):
            L=len(gb); cnt=0; i=at-1
            while True:
                b=gb[i%L]
                if b[0]=="read":
                    if b[1]==nm: return cnt
                    cnt+=1
                i-=1
        slotpos=[i for i,b in enumerate(gb) if b[0]=="slot"]+[len(gb)]
        waits={}
        for k in range(8):
            w=99
            for i in range(slotpos[k],slotpos[k+1]):
                if gb[i][0]=="use":
                    for j in range(slotpos[k],i): assert not (gb[j][0]=="read" and gb[j][1]==gb[i][1])
                    w=min(w,need(gb[i][1],slotpos[k]))
            waits[k]=w
        def emit(body,last=False,qbase=0,pr=None):
            for b in body:
                if b[0]=="slot":
                    w=waits[b[1]]
                    if last: w={0:waits[0],1:0,7:0}.get(b[1])
                    if w is not None: a(f"s_waitcnt lgkmcnt({w})")
                elif b[0]=="q":
                    if pr is not None:
                        q=qbase+b[1]
                        if q==0: a("s_setprio 1")
                        if q==pr: a("s_setprio 0")
                elif b[0]=="i": a(b[1])
                elif b[0]=="read":
                    if last and b[3]: continue
                    a(b[2])
        d=[2]*8
        pr=prio[0]; p1=max(pr-32*(unroll-1),1)
        emit(group_body(0,False,d),pr=p1)
        emit(group_body(1,False,[0]*8),pr=p1)
        a(f"""
        v_add_u32 v{vKn}, {2*10240}, v{vKn}
        v_add_u32 v{vVn}, {2*10240}, v{vVn}
        s_waitcnt vmcnt(0)
        s_barrier
        """)
        nloop=13//unroll; tail=13-nloop*unroll
        a(".p2align 5")
        a(f"L_p2_loop:")
        for u in range(unroll): emit(group_body(u,False,[0]*8),qbase=32*u,pr=pr)
        a(f"""
        s_add_u32 s{sG}, s{sG}, 1
        v_add_u32 v{vKn}, {unroll*10240}, v{vKn}
        v_add_u32 v{vVn}, {unroll*10240}, v{vVn}
        s_cmp_lg_u32 s{sG}, {nloop}
        s_cbranch_scc1 L_p2_loop
        """)
        for u in range(tail): emit(group_body(u,False,[0]*8),pr=p1)
        emit(group_body(tail,True,[0]*8),last=True,pr=p1)
        a(pv(7,0)); a(pv(7,1))
        g.RT(6)
        a.c("O image: [blk][q tile][40 fragments of 1 KiB]: fragment head = dims 10h..10h+7, fragment 32+(head>>2) dword head&3 = dims 10h+8,9")
        a(f"""
        s_setprio 0
        s_lshl_b32 s35, s30, 4
        s_lshl_b32 s36, s{sW}, 1
        s_add_u32 s35, s35, s36
        s_mul_i32 s35, s35, 40960
        s_lshr_b32 s36, s29, 2
        s_lshl_b32 s36, s36, 10
        s_and_b32 s37, s29, 3
        s_lshl_b32 s37, s37, 2
        s_add_u32 s36, s36, s37
        s_add_u32 s36, s36, 32768
        s_add_u32 s33, s35, s36
        s_lshl_b32 s36, s29, 10
        s_add_u32 s35, s35, s36
        """)
        a.c("safety check of the unshifted softmax: 2^-16 <= l <= 2^60 and finite accumulators, else redo with the true max")
        a(f"""
        s_mov_b32 s36, 0x37800000
        s_mov_b32 s37, 0x5d800000
        s_mov_b32 s38, 0x7f800000
        s_mov_b64 s[46:47], -1
        """)
        for q in range(2):
            a(f"v_cmp_le_f32 vcc, s36, v{O[q]+10}\ns_and_b64 s[46:47], s[46:47], vcc")
            a(f"v_cmp_ge_f32 vcc, s37, v{O[q]+10}\ns_and_b64 s[46:47], s[46:47], vcc")
            a(f"v_add_f32_e64 v{vT+2}, abs(v{O[q]}), abs(v{O[q]+1})")
            for j in range(2,10): a(f"v_add_f32_e64 v{vT+2}, v{vT+2}, abs(v{O[q]+j})")
            a(f"v_cmp_gt_f32 vcc, s38, v{vT+2}\ns_and_b64 s[46:47], s[46:47], vcc")
        a(f"""
        s_cmp_eq_u64 s[46:47], -1
        s_cbranch_scc0 L_p2_slow
        L_p2_fin:
        """)
        for q in range(2):
            a(f"v_rcp_f32 v{vT+2}, v{O[q]+10}\ns_nop 0")
            for j in range(10): a(f"v_mul_f32 v{O[q]+j}, v{O[q]+j}, v{vT+2}")
            for j in range(5): a(f"v_cvt_pk_bf16_f32 v{O[q]+j}, v{O[q]+2*j}, v{O[q]+2*j+1}")
            a(f"buffer_store_dwordx4 {vr(O[q],4)}, v{vKb}, s[{sO}:{sO+3}], s35 offen{st}")
            a(f"buffer_store_dword v{O[q]+4}, v{vKb}, s[{sO}:{sO+3}], s33 offen{st}")
            if q==0: a(f"s_add_u32 s35, s35, 40960\ns_add_u32 s33, s33, 40960")
        a.c("flag of this tile: F2 + (blk*4+qb)*256 + head*8")
        a(f"""
        s_lshl_b32 s40, s28, 2
        s_add_u32 s40, s40, s30
        s_lshl_b32 s40, s40, 8
        s_lshl_b32 s41, s29, 3
        s_add_u32 s40, s40, s41
        s_add_u32 s40, s40, {F2_OFF}
        s_waitcnt vmcnt(0)
        """)
        g.RT(7)
        a("s_barrier")
        t=g.tail; M=[SB[2],SB[3]]
        t(f"L_p2_slow:")
        t(f"v_mov_b32 v{vT+4}, 0xff800000\nv_mov_b32 v{vT+5}, 0xff800000")
        for ps in range(2):
            t(f"""
            v_mov_b32 v{vKn}, v{vKb}
            v_mov_b32 v{vVn}, v{vVb}
            s_mov_b32 s{sG}, 0
            L_p2_slow{ps}:
            """)
            for tt in range(4): t(f"ds_read_b128 {vr(K1[tt],4)}, v{vKn} offset:{tt*1024}")
            t(f"ds_read_b128 {vr(K2,4)}, v{vKn} offset:4096")
            if ps==1:
                t(f"s_mov_b64 exec, s[{sVM}:{sVM+1}]")
                for tt in range(4):
                    for s in range(2): t(f"ds_read_b128 {vr(V[tt][s],4)}, v{vVn} offset:{tt*1280+s*640}")
                t("s_mov_b64 exec, -1")
            t("s_waitcnt lgkmcnt(0)")
            for n in range(8):
                kt=n>>1; qt=n&1; sb=SB[0]
                q2=(Q2e if kt<2 else Q2o)[qt]
                c="0" if ps==0 else vr(M[qt],16)
                t(f"v_mfma_f32_32x32x16_bf16 {vr(sb,16)}, {vr(K1[kt],4)}, {vr(Q1[qt],4)}, {c}")
                t(f"v_mfma_f32_32x32x8_bf16 {vr(sb,16)}, {vr(K2+2*(kt&1),2)}, {vr(q2,2)}, {vr(sb,16)}")
                t("s_nop 15")
                if ps==0:
                    for j in range(0,16,2): t(f"v_max3_f32 v{vT+4+qt}, v{vT+4+qt}, v{sb+j}, v{sb+j+1}")
                else:
                    for j in range(16): t(f"v_exp_f32 v{sb+j}, v{sb+j}")
                    t("s_nop 1")
                    for s in range(2): t(f"v_smfmac_f32_32x32x32_bf16 {vr(O[qt],16)}, {vr(V[kt][s],4)}, {vr(sb+8*s,8)}, v{vIdx}")
            t(f"""
            v_add_u32 v{vKn}, 10240, v{vKn}
            v_add_u32 v{vVn}, 10240, v{vVn}
            s_add_u32 s{sG}, s{sG}, 1
            s_cmp_lg_u32 s{sG}, 16
            s_cbranch_scc1 L_p2_slow{ps}
            """)
            if ps==0:
                t.c("combine the two half-waves (same query, other 16 keys), negate, broadcast; clear O")
                for q in range(2):
                    t(f"""
                    v_mov_b32 v{vT+6}, v{vT+4+q}
                    v_mov_b32 v{vT+7}, v{vT+4+q}
                    s_nop 1
                    v_permlane32_swap_b32 v{vT+6}, v{vT+7}
                    s_nop 1
                    v_max_f32 v{vT+6}, v{vT+6}, v{vT+7}
                    v_sub_f32 v{vT+6}, 0, v{vT+6}
                    """)
                    for j in range(16): t(f"v_mov_b32 v{M[q]+j}, v{vT+6}")
                    for j in range(16): t(f"v_mov_b32 v{O[q]+j}, 0")
        t(f"s_nop 15\ns_branch L_p2_fin")

    def proj(g):
        a=g.a; ld=g.sc("ld3")
        vLane=1; vXd=2; vWa=3; vSt=4; vL16=6; vT=8
        WF=[[28+4*c for c in range(5)],[48+4*c for c in range(5)]]
        ACC=[[68+20*th+4*c for c in range(5)] for th in range(2)]
        NR=4
        X=[[108+32*((f//4)%NR)+8*(f%4)+4*th for th in range(2)] for f in range(20)]
        sX=8; sWm=12; sD=16; sW=sWave; sBlk=28; sTb=29; sCb=30; sXo=25; sWo=26; sM=27
        a.c("wave 0 knows the tag: it signals and polls; waves 4..7 do the projection, waves 1..3 are done")
        a(f"""
        s_and_b32 s34, s2, 7
        s_lshr_b32 s33, s2, 3
        s_lshr_b32 s{sBlk}, s34, 2
        s_and_b32 s34, s34, 3
        s_and_b32 s{sCb}, s33, 7
        s_lshr_b32 s35, s33, 3
        s_lshl_b32 s{sTb}, s34, 2
        s_add_u32 s{sTb}, s{sTb}, s35
        s_cmp_ge_u32 s{sW}, 4
        s_cbranch_scc1 L_p3_go
        s_cmp_lg_u32 s{sW}, 0
        s_cbranch_scc1 L_fin
        """)
        g.signal(a,40,"2")
        a(f"""
        s_lshl_b32 s40, s{sBlk}, 2
        s_add_u32 s40, s40, s34
        s_lshl_b32 s40, s40, 8
        s_add_u32 s40, s40, {F2_OFF}
        v_and_b32 v12, 31, v{vLane}
        v_lshl_add_u32 v12, v12, 3, s40
        """)
        g.poll(a,12,"2")
        a("s_barrier\ns_branch L_fin\nL_p3_go:")
        a(f"""
        s_load_dwordx2 s[38:39], s[0:1], 48
        s_sub_u32 s20, s{sW}, 4
        s_lshl_b32 s{sXo}, s{sTb}, 2
        s_add_u32 s{sXo}, s{sXo}, s20
        s_mul_i32 s{sXo}, s{sXo}, 40960
        s_mul_i32 s{sWo}, s{sCb}, 160
        s_mov_b32 s{sX+2}, {O_BLK}
        s_mov_b32 s{sX+3}, 0x20000
        s_mov_b32 s{sWm+2}, {WOT_IMG}
        s_mov_b32 s{sWm+3}, 0x20000
        v_lshlrev_b32 v{vL16}, 4, v{vLane}
        s_mul_i32 s35, s{sBlk}, {O_BLK}
        s_add_u32 s35, s35, {O_OFF}
        s_lshl_b32 s36, s{sBlk}, 3
        s_add_u32 s36, s36, s{sCb}
        s_mul_i32 s36, s36, {WOT_IMG}
        s_add_u32 s36, s36, {WOT_OFF}
        s_mul_i32 s{sM}, s20, 25600
        s_mov_b32 m0, s{sM}
        s_add_u32 s{sX}, s{sWS}, s35
        s_addc_u32 s{sX+1}, s{sWS+1}, 0
        s_add_u32 s{sWm}, s{sWS}, s36
        s_addc_u32 s{sWm+1}, s{sWS+1}, 0
        """)
        for n in range(25):
            if n and n%4==0: a(f"s_add_u32 s{sM}, s{sM}, 4096\ns_mov_b32 m0, s{sM}\ns_nop 0")
            a(f"buffer_load_dwordx4 v{vL16}, s[{sWm}:{sWm+3}], s{sM} offen offset:{(n&3)*1024}{ld} lds")
        a(f"""
        v_lshrrev_b32 v{vT}, 4, v{vLane}
        v_and_b32 v{vT+1}, 15, v{vLane}
        v_lshlrev_b32 v{vXd}, 9, v{vT}
        v_lshl_add_u32 v{vXd}, v{vT+1}, 4, v{vXd}
        v_lshlrev_b32 v{vWa}, 4, v{vLane}
        v_and_b32 v{vT+2}, 3, v{vLane}
        v_bfe_u32 v{vT+3}, v{vLane}, 2, 1
        v_lshl_or_b32 v{vT+2}, v{vT+3}, 3, v{vT+2}
        v_bfe_u32 v{vT+3}, v{vLane}, 3, 1
        v_lshl_or_b32 v{vT+2}, v{vT+3}, 2, v{vT+2}
        v_mul_u32_u24 v{vT+2}, 2560, v{vT+2}
        v_lshl_add_u32 v{vSt+1}, v{vT}, 3, v{vT+2}
        v_and_b32 v{vT+3}, 1, v{vT}
        v_lshl_add_u32 v{vT+2}, v{vT+3}, 5, v{vT+2}
        v_lshrrev_b32 v{vT+3}, 1, v{vT}
        v_lshl_add_u32 v{vSt}, v{vT+3}, 4, v{vT+2}
        s_mov_b32 s{sD+2}, {2048*2560}
        s_mov_b32 s{sD+3}, 0x20000
        s_lshl_b32 s40, s{sTb}, 7
        s_lshl_b32 s41, s20, 5
        s_add_u32 s40, s40, s41
        s_mul_i32 s40, s40, 2560
        s_mul_i32 s41, s{sBlk}, 1280
        s_add_u32 s40, s40, s41
        s_add_u32 s40, s40, s{sWo}
        s_add_u32 s41, s40, {16*2560}
        s_waitcnt vmcnt(0) lgkmcnt(0)
        s_mov_b32 s{sD}, s38
        s_mov_b32 s{sD+1}, s39
        s_barrier
        """)
        g.RT(8)
        def xl(R):
            L=[]
            for f in range(4*R,4*R+4):
                for th in range(2):
                    pre=[f"s_add_u32 s{sXo}, s{sXo}, 4096"] if ((f&1)==0 and th==0 and f>0) else []
                    L.append(pre+[f"buffer_load_dwordx4 {vr(X[f][th],4)}, v{vXd}, s[{sX}:{sX+3}], s{sXo} offen offset:{(f&1)*2048+th*256}{ld}"])
            return L
        def wreads(f,buf):
            base=(f%12)*5120
            return [f"ds_read_b128 {vr(WF[buf][c],4)}, v{vWa} offset:{base+c*1024}" for c in range(5)]
        for R in range(NR):
            for q in xl(R):
                for l in q: a(l)
        for x in wreads(0,0): a(x)
        issued=8*NR
        for f in range(20):
            buf=f&1
            nxt=xl(4) if f==4 else []
            if f==11: pass
            rd=wreads(f+1,buf^1) if f<19 else []
            a(f"s_waitcnt vmcnt({issued-2*(f+1)})")
            for c in range(5):
                a(f"s_waitcnt lgkmcnt({4 if rd else 4-c})")
                for th in range(2):
                    d=vr(ACC[th][c],4)
                    a(f"v_mfma_f32_16x16x32_bf16 {d}, {vr(WF[buf][c],4)}, {vr(X[f][th],4)}, {'0' if f==0 else d}")
                    if th==0 and rd:
                        if f==11 and c==0: a(f"v_add_u32 v{vWa}, {12*5120}, v{vWa}")
                        a(rd[c])
                    if nxt:
                        for l in nxt.pop(0): a(l)
                        issued+=1
        g.RT(9)
        a("s_nop 7")
        for th in range(2):
            for p in range(2):
                A0=ACC[th][2*p]; A1=ACC[th][2*p+1]
                a(f"v_cvt_pk_bf16_f32 v{A0}, v{A0}, v{A0+1}\nv_cvt_pk_bf16_f32 v{A0+1}, v{A0+2}, v{A0+3}")
                a(f"v_cvt_pk_bf16_f32 v{A0+2}, v{A1}, v{A1+1}\nv_cvt_pk_bf16_f32 v{A0+3}, v{A1+2}, v{A1+3}")
                a("s_nop 1")
                a(f"v_permlane16_swap_b32 v{A0}, v{A0+2}\nv_permlane16_swap_b32 v{A0+1}, v{A0+3}")
                a(f"buffer_store_dwordx4 {vr(A0,4)}, v{vSt}, s[{sD}:{sD+3}], s{40+th} offen offset:{p*64}")
            A4=ACC[th][4]
            a(f"v_cvt_pk_bf16_f32 v{A4}, v{A4}, v{A4+1}\nv_cvt_pk_bf16_f32 v{A4+1}, v{A4+2}, v{A4+3}")
            a(f"buffer_store_dwordx2 {vr(A4,2)}, v{vSt+1}, s[{sD}:{sD+3}], s{40+th} offen offset:128")

    def build(g):
        a=g.a
        kernel_header(a,NAME)
        g.qkv(); g.attn(); g.proj()
        if g.stamp:
            a("s_waitcnt vmcnt(0)")
            g.RT(10)
        a("L_fin:")
        if g.stamp:
            a(f"""
            s_lshl_b32 s52, s2, 3
            s_add_u32 s52, s52, s{sWave}
            s_lshl_b32 s52, s52, 6
            s_add_u32 s52, s52, {64<<20}
            v_mov_b32 v16, s52
            s_mov_b64 exec, 1
            global_store_dwordx4 v16, v[240:243], s[{sWS}:{sWS+1}]
            global_store_dwordx4 v16, v[244:247], s[{sWS}:{sWS+1}] offset:16
            global_store_dwordx4 v16, v[248:251], s[{sWS}:{sWS+1}] offset:32
            """)
        a("L_end:\ns_endpgm")
        t=g.tail
        t(".p2align 5\nL_tab:")
        for c,row in tables.table():
            for runs,dest in row: t(".byte "+", ".join(str(x) for x in runs+dest))
        t(".p2align 2")
        return a.text()+t.text(), kernel_desc(NAME, 256 if g.stamp else 236, 100)

def write(path, stamp=False, **opt):
    HEAD=open("concat_heads__mha_block__mha_block__prompt.s.ref").read().split("; Override launch")[0]
    t,d=Gen(stamp,opt).build()
    s=HEAD+"; @launch grid=(256,1,1) block=(512,1,1) lds=163840\n"+'.amdgcn_target "amdgcn-amd-amdhsa--gfx950"\n.text\n'+t+d
    open(path,"w").write(s)

if __name__=="__main__":
    write("fu.s"); write("fu_st.s",stamp=True)
```

```python
from asmlib import *
import tables, struct

def f32bits(x): return struct.unpack("<I",struct.pack("<f",x))[0]

def stamp_store(a, nw_shift, sW, off=64<<20):
    a(f"""
    s_waitcnt vmcnt(0)
    s_memtime s[78:79]
    s_memrealtime s[82:83]
    s_load_dwordx2 s[50:51], s[0:1], 64
    s_waitcnt lgkmcnt(0)
    s_lshl_b32 s52, s2, {nw_shift}
    s_add_u32 s52, s52, s{sW}
    s_lshl_b32 s52, s52, 6
    s_add_u32 s52, s52, {off}
    s_add_u32 s50, s50, s52
    s_addc_u32 s51, s51, 0
    """)
    for i in range(1,8): a(f"s_sub_u32 s{64+2*i}, s{64+2*i}, s64\nv_mov_b32 v{7+i}, s{64+2*i}")
    a("""
    v_mov_b32 v15, s64
    v_mov_b32 v16, 0
    s_mov_b64 exec, 1
    global_store_dwordx4 v16, v[8:11], s[50:51]
    global_store_dwordx4 v16, v[12:15], s[50:51] offset:16
    v_mov_b32 v18, s80
    v_mov_b32 v19, s82
    global_store_dwordx2 v16, v[18:19], s[50:51] offset:32
    """)

class Loop:
    def __init__(s,a,name,NS,STG,ACC,XF,WF,vXa,vWa,xoffs,ndma,dma_fn,sC,sStg,early=False):
        s.__dict__.update(locals())
    def reads(s,buf,ks):
        r=[]
        for tt in range(2): r.append(f"ds_read_b128 {vr(s.XF[buf][tt],4)}, v{s.vXa[ks%len(s.vXa)]} offset:{s.xoffs(tt,ks)}")
        for ct in range(2):
            for sec in range(2): r.append(f"ds_read_b64_tr_b16 {vr(s.WF[buf][ct]+2*sec,2)}, v{s.vWa[ct]} offset:{ks*4096+sec*1024}")
        return [r[0],r[2],r[3],r[4],r[5],r[1]]
    def mfmas(s,buf,swap):
        m=[]
        for tt,ct in ((0,0),(0,1),(1,1),(1,0)):
            A,B=(s.XF[buf][tt],s.WF[buf][ct]) if swap else (s.WF[buf][ct],s.XF[buf][tt])
            d=vr(s.ACC[tt][ct],16)
            m.append(f"v_mfma_f32_32x32x16_bf16 {d}, {vr(A,4)}, {vr(B,4)}, {d}")
        return m
    def prologue_reads(s):
        for ks in range(2):
            for x in s.reads(ks,ks): s.a(x)
    def chunk(s,swap,dma,vm,last=False,barpos=1):
        a=s.a
        G=s.dma_fn(groups=True) if dma else None
        slots={0:[],1:[],3:[]}
        if dma:
            loads=G[1:]
            slots[0]=[G[0]+loads[0],loads[1],loads[2]]; slots[1]=[loads[3],loads[4],loads[5]]
        for ks in range(4):
            m=s.mfmas(ks,swap)
            if ks==2:
                a("s_waitcnt lgkmcnt(0)")
                for i in range(barpos): a(m[i])
                if not last:
                    a(f"""
                    s_mov_b32 s{s.sStg+3}, s{s.sStg}
                    s_add_u32 s{s.sStg}, s{s.sStg}, {s.STG}
                    s_cmp_eq_u32 s{s.sStg}, {s.STG*s.NS}
                    s_cselect_b32 s{s.sStg}, 0, s{s.sStg}
                    s_sub_u32 s{s.sStg+2}, s{s.sStg}, s{s.sStg+3}
                    """)
                    for v in s.vXa+s.vWa: a(f"v_add_u32 v{v}, s{s.sStg+2}, v{v}")
                    a(f"s_waitcnt vmcnt({vm})\ns_barrier")
                    r=s.reads(0,0)
                else: r=[]
                rest=m[barpos:]
                for i,x in enumerate(rest):
                    k0=i*len(r)//len(rest); k1=(i+1)*len(r)//len(rest)
                    if i==0:
                        for y in r[k0:k1]: a(y)
                        a(x)
                    else:
                        for y in r[k0:k1]: a(y)
                        a(x)
                continue
            if ks<2: a("s_waitcnt lgkmcnt(6)")
            r=s.reads((ks+2)&3,(ks+2)&3) if not (last and ks==3) else []
            d=slots[ks]
            a(m[0])
            for y in r[0:2]: a(y)
            if d:
                for l in d[0]: a(l)
            a(m[1])
            for y in r[2:4]: a(y)
            if d:
                for l in d[1]: a(l)
            a(m[2])
            for y in r[4:6]: a(y)
            if d:
                for l in d[2]: a(l)
            if ks==3 and dma: a(f"s_add_u32 s{s.sC}, s{s.sC}, 1\ns_cmp_lg_u32 s{s.sC}, 8")
            a(m[3])
    def emit(s,tag,swap,barpos=1):
        a=s.a; L=f"L_{s.name}_{tag}"
        a(".p2align 5"); a(f"{L}:")
        s.chunk(swap,True,s.ndma,barpos=barpos)
        a(f"s_cbranch_scc1 {L}")
        s.chunk(swap,False,0,barpos=barpos)
        s.chunk(swap,False,0,last=True,barpos=barpos)

def w_frag_addr(a, vWa, vLane, vT, sRun, wbase):
    a(f"""
    v_lshrrev_b32 v{vT}, 4, v{vLane}
    v_and_b32 v{vT+1}, 1, v{vT}
    v_and_b32 v{vT+2}, 3, v{vLane}
    v_lshl_add_u32 v{vT+1}, v{vT+1}, 2, v{vT+2}
    v_lshlrev_b32 v{vT+1}, 3, v{vT+1}
    v_bfe_u32 v{vT+2}, v{vLane}, 2, 2
    v_lshrrev_b32 v{vT}, 1, v{vT}
    v_lshl_add_u32 v{vT}, v{vT}, 3, v{vT+2}
    v_lshlrev_b32 v{vT}, 8, v{vT}
    v_add_u32 v{vT}, {wbase}, v{vT}
    v_lshlrev_b32 v{vT+2}, 6, v{vT+2}
    """)
    for ct in range(2):
        a(f"""
        v_lshrrev_b64 v[{vT+4}:{vT+5}], v{vT+1}, s[{sRun+4*ct}:{sRun+4*ct+1}]
        v_and_b32 v{vT+4}, 31, v{vT+4}
        v_lshlrev_b32 v{vT+4}, 3, v{vT+4}
        v_xor_b32 v{vT+4}, v{vT+4}, v{vT+2}
        v_add_u32 v{vWa[ct]}, v{vT}, v{vT+4}
        """)

def post_flags(t, flags):
    if "nomfma" in flags: t="\n".join(l for l in t.split("\n") if "v_mfma" not in l and "ds_read" not in l)+"\n"
    if "nodma" in flags: t="\n".join(l for l in t.split("\n") if " lds" not in l)+"\n"
    if "nostore" in flags: t="\n".join(l for l in t.split("\n") if "buffer_store" not in l)+"\n"
    if "sc1x4" in flags: t="\n".join(l+" sc1" if "buffer_store_dwordx4" in l else l for l in t.split("\n"))+"\n"
    if "ntx" in flags: t="\n".join(l.replace(" offen"," offen nt") if "buffer_load" in l and "s[8:11]" in l else l for l in t.split("\n"))+"\n"
    if "ntw" in flags: t="\n".join(l.replace(" offen"," offen nt") if "buffer_load" in l and "s[12:15]" in l else l for l in t.split("\n"))+"\n"
    if "s1x" in flags: t="\n".join(l.replace(" offen"," offen sc1") if "buffer_load" in l and "s[8:11]" in l else l for l in t.split("\n"))+"\n"
    for f,sfx in (("sc1"," sc1"),("nt"," nt"),("sc01"," sc0 sc1"),("sc1nt"," sc1 nt")):
        if f in flags: t="\n".join(l+sfx if "buffer_store" in l else l for l in t.split("\n"))+"\n"
    return t

def wot_prep(a,name,vLane,sW,sBlk):
    vT=8; vWd=[[16+u for u in range(5)],[21+u for u in range(5)]]; vWa=26; vL16=27; F=28
    sWm=12; sD=16
    a(f"""
    s_mul_i32 s35, s{sBlk}, 24
    s_add_u32 s36, s0, s35
    s_addc_u32 s37, s1, 0
    s_load_dwordx2 s[6:7], s[36:37], 16
    s_lshl_b32 s33, s61, 1
    s_add_u32 s33, s33, s60
    s_sub_u32 s33, s33, 30
    s_mul_i32 s26, s33, 160
    s_lshl_b32 s34, s{sBlk}, 3
    s_add_u32 s34, s34, s33
    s_mul_i32 s34, s34, {WOT_IMG}
    s_add_u32 s34, s34, {WOT_OFF}
    s_add_u32 s{sD}, s38, s34
    s_addc_u32 s{sD+1}, s39, 0
    s_mov_b32 s{sD+2}, {WOT_IMG}
    s_mov_b32 s{sD+3}, 0x20000
    s_mov_b32 s{sWm+2}, {640*1280}
    s_mov_b32 s{sWm+3}, 0x20000
    v_lshlrev_b32 v{vL16}, 4, v{vLane}
    """)
    for u in range(5):
        a(f"""
        v_add_u32 v{vT+2}, {64*u}, v{vLane}
        v_mul_u32_u24 v{vT+3}, 6554, v{vT+2}
        v_lshrrev_b32 v{vT+3}, 16, v{vT+3}
        v_mul_u32_u24 v{vT+4}, 10, v{vT+3}
        v_sub_u32 v{vT+2}, v{vT+2}, v{vT+4}
        v_lshlrev_b32 v{vT+2}, 4, v{vT+2}
        v_lshrrev_b32 v{vT+4}, 4, v{vT+3}
        v_bfe_u32 v{vT+5}, v{vT+3}, 2, 1
        v_mul_u32_u24 v{vT+5}, 10, v{vT+5}
        v_bfe_u32 v{vT+6}, v{vT+3}, 3, 1
        v_and_b32 v{vT+7}, 3, v{vT+3}
        v_lshl_add_u32 v{vT+1}, v{vT+6}, 2, v{vT+7}
        v_mad_u32_u24 v{vT+7}, v{vT+4}, 20, v{vT+5}
        v_add_u32 v{vT+7}, v{vT+7}, v{vT+1}
        v_mul_u32_u24 v{vT+7}, 1280, v{vT+7}
        v_add_u32 v{vWd[0][u]}, v{vT+7}, v{vT+2}
        v_mul_u32_u24 v{vT+4}, 80, v{vT+4}
        v_add_u32 v{vT+4}, v{vT+4}, v{vT+5}
        v_mad_u32_u24 v{vT+4}, v{vT+6}, 40, v{vT+4}
        v_bfe_u32 v{vT+5}, v{vT+3}, 1, 1
        v_mad_u32_u24 v{vT+4}, v{vT+5}, 20, v{vT+4}
        v_and_b32 v{vT+5}, 1, v{vT+3}
        v_add3_u32 v{vT+4}, v{vT+4}, v{vT+5}, 8
        v_mul_u32_u24 v{vT+4}, 1280, v{vT+4}
        v_add_u32 v{vWd[1][u]}, v{vT+4}, v{vT+2}
        """)
    a(f"""
    v_lshrrev_b32 v{vT}, 4, v{vLane}
    v_lshrrev_b32 v{vT+2}, 1, v{vT}
    v_lshlrev_b32 v{vT+2}, 4, v{vT+2}
    v_and_b32 v{vT+3}, 1, v{vT}
    v_lshl_add_u32 v{vT+2}, v{vT+3}, 2, v{vT+2}
    v_bfe_u32 v{vT+3}, v{vLane}, 2, 2
    v_add_u32 v{vT+2}, v{vT+2}, v{vT+3}
    v_mul_u32_u24 v{vT+2}, 160, v{vT+2}
    v_and_b32 v{vT+3}, 3, v{vLane}
    v_lshl_add_u32 v{vWa}, v{vT+3}, 3, v{vT+2}
    s_mul_i32 s27, s{sW}, 5120
    v_add_u32 v{vWa}, s27, v{vWa}
    s_mul_i32 s34, s{sW}, {40*1280}
    s_add_u32 s34, s34, s26
    s_add_u32 s35, s34, {320*1280}
    s_mul_i32 s36, s{sW}, {160*1280}
    s_add_u32 s36, s36, s26
    s_waitcnt lgkmcnt(0)
    s_mov_b32 s{sWm}, s6
    s_mov_b32 s{sWm+1}, s7
    """)
    def stage(r):
        for u in range(5):
            a(f"s_add_u32 m0, s27, {r*40960+u*1024}\ns_nop 0")
            a(f"buffer_load_dwordx4 v{vWd[r==2][u]}, s[{sWm}:{sWm+3}], s{34+r} offen lds")
    def out(r):
        for c in range(5):
            for sec in range(2): a(f"ds_read_b64_tr_b16 {vr(F+20*r+4*c+2*sec,2)}, v{vWa} offset:{sec*1280+c*32}")
        a(f"v_add_u32 v{vWa}, 40960, v{vWa}\ns_add_u32 s37, s27, {r*40960}\ns_add_u32 s33, s37, 4096\ns_waitcnt lgkmcnt(0)")
        for c in range(5):
            a(f"buffer_store_dwordx4 {vr(F+20*r+4*c,4)}, v{vL16}, s[{sD}:{sD+3}], {'s37' if c<4 else 's33'} offen offset:{(c&3)*1024}")
    stage(0); stage(1)
    a(f"s_cmp_ge_u32 s{sW}, 4\ns_cbranch_scc1 L_{name}_w2")
    stage(2)
    a("s_waitcnt vmcnt(0)")
    out(0); out(1); out(2)
    a(f"s_endpgm\nL_{name}_w2:\ns_waitcnt vmcnt(0)")
    out(0); out(1)

def gen_qkv(name="qkv_kernel", stamp=False, rot=1, flags=(), pf='', early=True, barpos=1):
    a=Asm(); kernel_header(a,name)
    def ST(i):
        if stamp: a(f"s_memtime s[{64+2*i}:{65+2*i}]"+("\ns_memrealtime s[80:81]" if i==0 else ""))
    NS=3; STG=49152
    vLane=1; vXa=[2,3,4,5]; vWa=[6,7]; vT=8
    vXd=[16,17,18,19]; vWd=[20,21]; vPf=160
    XF=[[24+16*b,28+16*b] for b in range(4)]; WF=[[32+16*b,36+16*b] for b in range(4)]
    ACC=[[88,104],[120,136]]; vSt=152; NV=162
    sX=8; sWm=12; sD=16; sW=20; sC=21; sStg=84
    sXo=25; sWo=26; sKc=27; sTab=40
    sBlk=28; sTb=29; sCb=30; sTyp=31; sM=22; sMask=48
    sGo=56; sScale=58
    a(f"""
    s_cmp_ge_u32 s2, 256
    s_cbranch_scc1 L_{name}_end
    s_lshr_b32 s33, s2, 3
    s_and_b32 s34, s2, 7
    s_lshr_b32 s{sBlk}, s34, 2
    s_mul_i32 s35, s{sBlk}, 24
    s_add_u32 s36, s0, s35
    s_addc_u32 s37, s1, 0
    s_load_dwordx4 s[4:7], s[36:37], 0
    s_load_dwordx2 s[38:39], s[0:1], 64
    """)
    ST(0)
    a(f"""
    v_and_b32 v{vLane}, 63, v0
    v_lshrrev_b32 v{vT}, 6, v0
    s_and_b32 s34, s34, 3
    v_readfirstlane_b32 s{sW}, v{vT}
    s_mov_b32 s60, s33
    s_mov_b32 s61, s34
    s_cmp_ge_u32 s33, 15
    s_cselect_b32 s35, 15, 0
    s_cselect_b32 s{sTb}, 1, 0
    s_sub_u32 s33, s33, s35
    s_lshl_b32 s35, s34, 1
    s_add_u32 s{sTb}, s{sTb}, s35
    s_mul_i32 s{sTyp}, s33, 52
    s_lshr_b32 s{sTyp}, s{sTyp}, 8
    s_mul_i32 s35, s{sTyp}, 5
    s_sub_u32 s{sCb}, s33, s35
    s_mul_i32 s{sKc}, s34, 5
    s_lshr_b32 s{sKc}, s{sKc}, 1
    """)
    if rot==0: a(f"s_mov_b32 s{sKc}, 0")
    a.c("s33 = column block 0..14, sTb = token block, sTyp 0/1/2 = Q/K/V, sCb = block inside the type, sKc = first k chunk")
    a(f"""
    s_cmp_ge_u32 s{sTyp}, 2
    s_cselect_b32 s35, 5, s{sCb}
    s_lshl_b32 s35, s35, 1
    s_and_b32 s36, s{sW}, 1
    s_add_u32 s35, s35, s36
    s_lshl_b32 s35, s35, 5
    s_getpc_b64 s[36:37]
    L_{name}_pc:
    s_add_u32 s36, s36, L_{name}_tab-L_{name}_pc
    s_addc_u32 s37, s37, 0
    s_add_u32 s36, s36, s35
    s_addc_u32 s37, s37, 0
    s_load_dwordx8 s[{sTab}:{sTab+7}], s[36:37], 0
    s_mul_i32 s{sXo}, s{sTb}, {256*1280}
    s_lshl_b32 s{sWo}, s33, 8
    s_mov_b32 s{sX+2}, {2048*1280}
    s_mov_b32 s{sX+3}, 0x20000
    s_mov_b32 s{sWm+2}, {640*3840}
    s_mov_b32 s{sWm+3}, 0x20000
    """)
    a.c("DMA source offsets")
    a(f"""
    v_lshrrev_b32 v{vT}, 3, v{vLane}
    s_lshl_b32 s35, s{sW}, 5
    v_add_u32 v{vT}, s35, v{vT}
    v_mul_u32_u24 v{vT}, 1280, v{vT}
    v_lshrrev_b32 v{vT+1}, 4, v{vLane}
    v_and_b32 v{vT+2}, 7, v{vLane}
    v_xor_b32 v{vT+2}, v{vT+2}, v{vT+1}
    v_lshl_add_u32 v{vXd[0]}, v{vT+2}, 4, v{vT}
    v_xor_b32 v{vT+2}, 4, v{vT+2}
    v_lshl_add_u32 v{vXd[1]}, v{vT+2}, 4, v{vT}
    v_add_u32 v{vXd[1]}, {8*1280}, v{vXd[1]}
    v_add_u32 v{vXd[2]}, {16*1280}, v{vXd[0]}
    v_add_u32 v{vXd[3]}, {16*1280}, v{vXd[1]}
    s_lshl_b32 s35, s{sW}, 3
    v_add_u32 v{vT}, s35, v{vT+1}
    v_mul_u32_u24 v{vT}, 3840, v{vT}
    v_and_b32 v{vT+2}, 15, v{vLane}
    v_lshlrev_b32 v{vT+1}, 2, v{vT+1}
    v_xor_b32 v{vT+2}, v{vT+2}, v{vT+1}
    v_lshl_add_u32 v{vWd[0]}, v{vT+2}, 4, v{vT}
    v_add_u32 v{vWd[1]}, {4*3840}, v{vWd[0]}
    s_lshl_b32 s{sM}, s{sW}, 12
    s_lshl_b32 s{sM+1}, s{sW}, 11
    s_add_u32 s{sM+1}, s{sM+1}, 32768
    s_mov_b32 s{sStg}, 0
    """)
    npf=0
    if pf:
        a.c("sequential first touch of this XCD's share of x (512 rows) and W (160 rows): 1/32 of it per workgroup, one dword per 64 bytes")
        a(f"""
        v_lshlrev_b32 v{vT+4}, 6, v0
        v_mov_b32 v{vT+5}, 0x7f000000
        v_cmp_gt_u32 vcc, 320, v0
        s_mul_i32 s62, s61, {512*1280}
        s_mul_i32 s35, s60, 20480
        s_add_u32 s62, s62, s35
        s_mul_i32 s63, s61, {160*3840}
        s_mul_i32 s35, s60, 19200
        s_add_u32 s63, s63, s35
        v_cndmask_b32 v{vT+4}, v{vT+5}, v{vT+4}, vcc
        """)
    a(f"""
    s_waitcnt lgkmcnt(0)
    s_mov_b32 s{sX}, s4
    s_mov_b32 s{sX+1}, s5
    s_mov_b32 s{sWm}, s6
    s_mov_b32 s{sWm+1}, s7
    """)
    def prefetch():
        a(f"""
        s_cmp_ge_u32 s{sW}, 5
        s_cbranch_scc1 L_{name}_npf{len(a.lines)}
        """)
        lab=a.lines[-1].split()[-1]
        a(f"""
        buffer_load_dword v{vPf}, v{vT+4}, s[{sX}:{sX+3}], s62 offen
        buffer_load_dword v{vPf+1}, v{vT+4}, s[{sWm}:{sWm+3}], s63 offen
        {lab}:
        """)
    a(f"s_cmp_ge_u32 s60, 30\ns_cbranch_scc1 L_{name}_idle")
    def dma(stg=None, groups=False):
        st=f"s{sStg+3}" if stg is None else str(stg*STG)
        G=[[f"s_lshl_b32 s34, s{sKc}, 7", f"s_add_u32 s34, s34, s{sXo}", f"s_mul_i32 s35, s{sKc}, {64*3840}",
            f"s_add_u32 s35, s35, s{sWo}", f"s_add_u32 s36, s{sM}, {st}", f"s_add_u32 s37, s{sM+1}, {st}",
            f"s_add_u32 s{sKc}, s{sKc}, 1", f"s_cmp_eq_u32 s{sKc}, 10", f"s_cselect_b32 s{sKc}, 0, s{sKc}"]]
        for k,i in [("x",0),("w",0),("x",1),("w",1),("x",2),("x",3)]:
            g=[f"s_add_u32 m0, s{36 if k=='x' else 37}, {i*1024}", "s_nop 0"]
            if k=="x": g.append(f"buffer_load_dwordx4 v{vXd[i]}, s[{sX}:{sX+3}], s34 offen lds")
            else: g.append(f"buffer_load_dwordx4 v{vWd[i]}, s[{sWm}:{sWm+3}], s35 offen lds")
            G.append(g)
        if groups: return G
        for g in G:
            for l in g: a(l)
    def pfl():
        if "x" in pf: a(f"buffer_load_dword v{vPf}, v{vT+4}, s[{sX}:{sX+3}], s62 offen")
        if "w" in pf: a(f"buffer_load_dword v{vPf+1}, v{vT+4}, s[{sWm}:{sWm+3}], s63 offen")
    if "f" in pf: pfl()
    dma(0)
    if pf and "f" not in pf:
        pfl(); npf=len(pf)
    ST(1)
    a.c("fragment addresses")
    a(f"""
    v_and_b32 v{vT}, 31, v{vLane}
    s_lshr_b32 s35, s{sW}, 1
    s_lshl_b32 s35, s35, 13
    v_lshlrev_b32 v{vT+1}, 7, v{vT}
    v_add_u32 v{vT+1}, s35, v{vT+1}
    v_bfe_u32 v{vT+2}, v{vT}, 1, 3
    v_lshrrev_b32 v{vT+3}, 5, v{vLane}
    v_xor_b32 v{vT+2}, v{vT+2}, v{vT+3}
    v_lshl_add_u32 v{vXa[0]}, v{vT+2}, 4, v{vT+1}
    v_xor_b32 v{vXa[1]}, 32, v{vXa[0]}
    v_xor_b32 v{vXa[2]}, 64, v{vXa[0]}
    v_xor_b32 v{vXa[3]}, 96, v{vXa[0]}
    """)
    w_frag_addr(a,vWa,vLane,vT,sTab,32768)
    for tt in range(2):
        for ct in range(2):
            for j in range(16): a(f"v_mov_b32 v{ACC[tt][ct]+j}, 0")
    dma(1)
    lp=Loop(a,name,NS,STG,ACC,XF,WF,vXa,vWa,lambda tt,ks:tt*4096,6,dma,sC,sStg,early)
    a(f"s_mov_b32 s{sC}, 0\ns_cmp_eq_u32 s{sTyp}, 2\ns_cbranch_scc1 L_{name}_v")
    a.c("destination: s[sD] = ws + base(type) + blk*32*IMG ; s34 = IMG ; sGo = group offset")
    a(f"""
    s_lshl_b32 s34, {Q_IMG}, s{sTyp}
    s_lshl_b32 s35, 5120, s{sTyp}
    s_cmp_eq_u32 s{sTyp}, 0
    s_cselect_b32 s36, {Q_OFF}, {KV_OFF}
    s_mov_b32 s{sScale}, {f32bits(QSCALE):#x}
    s_mov_b32 s{sScale+1}, {f32bits(QSCALE):#x}
    s_lshl_b32 s{sD+2}, s34, 5
    s_mov_b32 s{sD+3}, 0x20000
    s_mul_i32 s37, s{sD+2}, s{sBlk}
    s_add_u32 s36, s36, s37
    s_add_u32 s{sD}, s38, s36
    s_addc_u32 s{sD+1}, s39, 0
    s_lshl_b32 s36, s{sTb}, 1
    s_lshr_b32 s37, s{sW}, 2
    s_add_u32 s36, s36, s37
    s_mul_i32 s{sGo}, s35, s36
    s_bfe_u32 s36, s{sW}, 0x10001
    s_lshl_b32 s37, s36, 9
    s_add_u32 s37, s37, 4096
    s_lshl_b32 s36, s36, 11
    v_and_b32 v{vT}, 0x13, v{vLane}
    v_bfe_u32 v{vT+1}, v{vLane}, 2, 1
    v_lshl_or_b32 v{vT}, v{vT+1}, 3, v{vT}
    v_bfe_u32 v{vT+1}, v{vLane}, 3, 1
    v_lshl_or_b32 v{vT}, v{vT+1}, 2, v{vT}
    v_lshlrev_b32 v{vT}, 4, v{vT}
    v_lshrrev_b32 v{vT+1}, 5, v{vLane}
    v_lshlrev_b32 v{vT+1}, 4, v{vT+1}
    """)
    a.c("vT = kappa*16, vT+1 = 16*h (bit position of this half's two table bytes)")
    for ct in range(2):
        for qp in range(2):
            sd=sTab+4*ct+2+qp; n=2*ct+qp; mk=f"s[{sMask+2*n}:{sMask+2*n+1}]"
            a(f"""
            v_lshrrev_b32 v{vT+2}, v{vT+1}, s{sd}
            v_and_b32 v{vT+3}, 31, v{vT+2}
            v_mul_lo_u32 v{vT+3}, v{vT+3}, s34
            v_bfe_u32 v{vT+6}, v{vT+2}, 8, 5
            v_mul_lo_u32 v{vSt+2*n+1}, v{vT+6}, s34
            v_bfe_u32 v{vT+5}, v{vT+2}, 6, 1
            v_lshl_add_u32 v{vT+5}, v{vT+5}, 9, s36
            v_and_b32 v{vT+2}, 32, v{vT+2}
            v_cmp_ne_u32 {mk}, 0, v{vT+2}
            v_mov_b32 v{vT+6}, s37
            v_add_u32 v{vT+7}, 1024, v{vT+5}
            v_cndmask_b32 v{vT+5}, v{vT+5}, v{vT+6}, {mk}
            v_cndmask_b32 v{vT+7}, v{vT+7}, v{vT+6}, {mk}
            v_add3_u32 v{vSt+2*n}, v{vT+3}, v{vT+5}, v{vT}
            v_add3_u32 v{vSt+2*n+1}, v{vSt+2*n+1}, v{vT+7}, v{vT}
            """)
    def start():
        a(f"s_mov_b32 s{sStg+3}, {(NS-1)*STG}")
        ST(2)
        a(f"s_waitcnt vmcnt({6*(NS-2)+npf})\ns_barrier")
        ST(3)
        lp.prologue_reads()
    start()
    lp.emit("qk",False,barpos)
    ST(4)
    a(f"s_cmp_lg_u32 s{sTyp}, 0\ns_nop 6\ns_waitcnt lgkmcnt(0)\ns_cbranch_scc1 L_{name}_nsc")
    for ct in range(2):
        for tt in range(2):
            b=ACC[tt][ct]
            for j in range(0,16,2): a(f"v_pk_mul_f32 {vr(b+j,2)}, {vr(b+j,2)}, s[{sScale}:{sScale+1}]")
    a(f"L_{name}_nsc:")
    P=24
    for ct in range(2):
        for qp in range(2):
            n=2*ct+qp; st=P+8*n; mk=f"s[{sMask+2*n}:{sMask+2*n+1}]"
            b0=ACC[0][ct]+8*qp; b1=ACC[1][ct]+8*qp
            for k in range(2):
                a(f"v_cvt_pk_bf16_f32 v{st+k}, v{b0+2*k}, v{b0+2*k+1}")
                a(f"v_cvt_pk_bf16_f32 v{b0+k}, v{b0+4+2*k}, v{b0+5+2*k}")
            for k in range(2):
                a(f"v_cvt_pk_bf16_f32 v{b0+2+k}, v{b1+2*k}, v{b1+2*k+1}")
                a(f"v_cvt_pk_bf16_f32 v{st+6+k}, v{b1+4+2*k}, v{b1+5+2*k}")
            for k in range(2):
                a(f"v_cndmask_b32 v{st+2+k}, v{b0+k}, v{b0+2+k}, {mk}")
                a(f"v_cndmask_b32 v{st+4+k}, v{b0+2+k}, v{b0+k}, {mk}")
            a(f"buffer_store_dwordx4 {vr(st,4)}, v{vSt+2*n}, s[{sD}:{sD+3}], s{sGo} offen")
            a(f"buffer_store_dwordx4 {vr(st+4,4)}, v{vSt+2*n+1}, s[{sD}:{sD+3}], s{sGo} offen")
    a(f"s_branch L_{name}_done")
    a(f"L_{name}_v:")
    a(f"""
    s_mov_b32 s{sD+2}, {32*KV_IMG}
    s_mov_b32 s{sD+3}, 0x20000
    s_mul_i32 s37, s{sBlk}, {32*KV_IMG}
    s_add_u32 s{sD}, s38, s37
    s_addc_u32 s{sD+1}, s39, 0
    s_lshl_b32 s36, s{sTb}, 1
    s_lshr_b32 s37, s{sW}, 2
    s_add_u32 s36, s36, s37
    s_mul_i32 s35, s36, 10240
    s_bfe_u32 s36, s{sW}, 0x10001
    s_mul_i32 s36, s36, 2560
    s_add_u32 s35, s35, s36
    s_add_u32 s{sGo}, s35, 5120
    s_lshl_b32 s36, s{sCb}, 7
    s_and_b32 s37, s{sW}, 1
    s_lshl_b32 s37, s37, 6
    s_add_u32 s36, s36, s37
    s_mov_b32 s34, {KV_IMG}
    v_and_b32 v{vT}, 31, v{vLane}
    v_add_u32 v{vT}, s36, v{vT}
    v_lshrrev_b32 v{vT+1}, 5, v{vLane}
    v_mul_u32_u24 v{vT+1}, 320, v{vT+1}
    """)
    for ct in range(2):
        a(f"""
        v_mul_u32_u24 v{vT+2}, 3277, v{vT}
        v_lshrrev_b32 v{vT+2}, 16, v{vT+2}
        v_mul_u32_u24 v{vT+3}, 20, v{vT+2}
        v_sub_u32 v{vT+3}, v{vT}, v{vT+3}
        v_mul_lo_u32 v{vT+2}, v{vT+2}, s34
        v_add_u32 v{vT+4}, 6, v{vT+3}
        v_cmp_gt_u32 vcc, 4, v{vT+3}
        v_subrev_u32 v{vT+5}, 10, v{vT+3}
        v_add_u32 v{vT}, 32, v{vT}
        v_cndmask_b32 v{vT+4}, v{vT+4}, v{vT+3}, vcc
        v_cmp_lt_u32 vcc, 13, v{vT+3}
        v_add_u32 v{vT+2}, v{vT+2}, v{vT+1}
        s_nop 0
        v_cndmask_b32 v{vT+4}, v{vT+4}, v{vT+5}, vcc
        v_lshl_add_u32 v{vSt+ct}, v{vT+4}, 4, v{vT+2}
        """)
    start()
    lp.emit("vv",True,barpos)
    ST(4)
    a("s_nop 7")
    for tt,ct in ((0,0),(0,1),(1,1),(1,0)):
        b=ACC[tt][ct]
        for j in range(8): a(f"v_cvt_pk_bf16_f32 v{b+j}, v{b+2*j}, v{b+2*j+1}")
        for s in range(2):
            a(f"buffer_store_dwordx4 {vr(b+4*s,4)}, v{vSt+ct}, s[{sD}:{sD+3}], s{sGo} offen offset:{tt*1280+s*640}")
    a(f"L_{name}_done:")
    ST(5); ST(6)
    if stamp: stamp_store(a,3,sW,64<<20)
    a("s_endpgm")
    a(f"L_{name}_idle:")
    pfl()
    wot_prep(a,name,vLane,sW,sBlk)
    a(f"L_{name}_end:\ns_endpgm")
    a(".p2align 5")
    a(f"L_{name}_tab:")
    for c,row in tables.table():
        for runs,dest in row:
            a(".byte "+", ".join(str(x) for x in runs+dest))
    a(".p2align 2")
    return post_flags(a.text(),flags), kernel_desc(name,NV,96)
```

```python
import numpy as np
from asmlib import *
def f2bf(x):
    u=np.ascontiguousarray(x,dtype=np.float32).view(np.uint32)
    return ((u+0x7fff+((u>>16)&1))>>16).astype(np.uint16)
def head_runs(h):
    if h==19: return dict(p0=(1,2),p1=(3,4),ex=0)
    if h==25: return dict(p0=(0,1),p1=(3,4),ex=2)
    return dict(p0=(0,1),p1=(2,3),ex=4)
def build_images(qkv):
    img=np.zeros(O_OFF//2,np.uint16)
    sw=np.array([swap23(i) for i in range(32)])
    for b in range(2):
        y=qkv[b].reshape(2048,3,32,20)
        for h in range(32):
            p=b*32+h; hr=head_runs(h)
            cols=lambda rs:[4*r+j for r in rs for j in range(4)]
            for typ,base,gs in ((0,Q_OFF+p*Q_IMG,5120),(1,KV_OFF+p*KV_IMG,10240)):
                m=f2bf(y[:,typ,h,:]*(np.float32(QSCALE) if typ==0 else np.float32(1)))
                m=m.reshape(16,4,32,20)[:,:,sw,:]
                for g in range(16):
                    o=(base+g*gs)//2
                    for t in range(4):
                        img[o+t*512:o+t*512+256]=m[g,t][:,cols(hr['p0'])].ravel()
                        img[o+t*512+256:o+t*512+512]=m[g,t][:,cols(hr['p1'])].ravel()
                    e=m[g][:,:,cols((hr['ex'],))]
                    k2=np.stack([np.concatenate([e[2*hh],e[2*hh+1]],axis=1) for hh in range(2)])
                    img[o+2048:o+2560]=k2.ravel()
            v=f2bf(y[:,2,h,:]).reshape(16,4,32,20)[:,:,sw,:]
            order=np.argsort([vslot(d) for d in range(20)])
            vv=v.reshape(16,4,4,8,20)[:,:,:,:,order].transpose(0,1,2,4,3)
            for g in range(16):
                o=(KV_OFF+p*KV_IMG+g*10240+5120)//2
                img[o:o+2560]=vv[g].ravel()
    return img.view(np.uint8)

def o_index():
    idx=np.zeros((2,2048,640),np.int64)
    tok=np.arange(2048); qt=tok>>5; i=np.array([swap23(t&31) for t in tok])
    for f in range(640):
        head=f//20; d=f%20; h=d//10; r=d%10
        if r<8: off=head*512+(h*32+i)*8+r
        else: off=(32+(head>>2))*512+(h*32+i)*8+(head&3)*2+(r-8)
        for b in range(2): idx[b,:,f]=b*(O_BLK//2)+qt*20480+off
    return idx
def decode_o(img): return img[o_index()]
def encode_o(o):
    img=np.zeros(O_BLK,np.uint16); img[o_index()]=o; return img
```

```python
import itertools, random
from images import head_runs
def block_items(cb):
    lo=32*cb; hi=lo+32; pieces=[]; extras=[]
    for h in range(32):
        hr=head_runs(h)
        for part,key in ((0,'p0'),(1,'p1')):
            r0,r1=[5*h+r for r in hr[key]]
            if lo<=r0<hi:
                assert lo<=r1<hi, (cb,h,key)
                pieces.append((h,part,r0-lo,r1-lo))
            else: assert not (lo<=r1<hi)
        e=5*h+hr['ex']
        if lo<=e<hi: extras.append((h,e-lo))
    assert 2*len(pieces)+len(extras)==32
    return pieces,extras
def conflicts(runs):
    seen={}
    for r in runs: seen[r%8]=seen.get(r%8,0)+1
    return sum(v-1 for v in seen.values())
def assign(cb, seed=0):
    pieces,extras=block_items(cb)
    rng=random.Random(seed); best=None
    for it in range(200000):
        ex=extras[:]; rng.shuffle(ex)
        slots=[('p',)+p for p in pieces]+[('e',ex[2*i][0],ex[2*i+1][0],ex[2*i][1],ex[2*i+1][1]) for i in range(len(ex)//2)]
        rng.shuffle(slots)
        c=sum(conflicts([r for s in slots[4*t:4*t+4] for r in s[3:5]]) for t in range(4))
        if best is None or c<best[0]:
            best=(c,slots)
            if c==0: break
    return best
def table():
    rows=[]
    for cb in range(5):
        c,slots=assign(cb)
        row=[]
        for T in range(4):
            runs=[0]*8; dest=[0]*8
            for qp in range(2):
                for h in range(2):
                    s=slots[4*T+2*qp+h]
                    for k in range(2):
                        rho=2*qp+k
                        runs[4*(rho>>1)+2*(rho&1)+h]=s[3+k]
                    if s[0]=='p': dest[4*qp+2*h]=s[1]|(s[2]<<6); dest[4*qp+2*h+1]=s[1]
                    else: dest[4*qp+2*h]=s[1]|32; dest[4*qp+2*h+1]=s[2]
            row.append((runs,dest))
        rows.append((c,row))
    rows.append((0,[([8*T+e for e in range(8)],[0]*8) for T in range(4)]))
    return rows
if __name__=="__main__":
    for c,row in table(): print(c,row)
```

```python
from fused import *
V={"st":dict(),"pld":dict(ld2="",ld3=""),"nt1":dict(st1=" sc1 nt"),"pl1":dict(st1="")}
for nm,o in V.items(): write(f"fx_{nm}.s",stamp=True,**o)
print(" ".join(f"fx_{nm}.s" for nm in V)); print(", ".join(f'"gen/fx_{nm}.s"' for nm in V))
```

```python
from asmlib import *
import tables, struct

def f32bits(x): return struct.unpack("<I",struct.pack("<f",x))[0]

def stamp_store(a, nw_shift, sW, off=64<<20):
    a(f"""
    s_waitcnt vmcnt(0)
    s_memtime s[78:79]
    s_memrealtime s[82:83]
    s_load_dwordx2 s[50:51], s[0:1], 64
    s_waitcnt lgkmcnt(0)
    s_lshl_b32 s52, s2, {nw_shift}
    s_add_u32 s52, s52, s{sW}
    s_lshl_b32 s52, s52, 6
    s_add_u32 s52, s52, {off}
    s_add_u32 s50, s50, s52
    s_addc_u32 s51, s51, 0
    """)
    for i in range(1,8): a(f"s_sub_u32 s{64+2*i}, s{64+2*i}, s64\nv_mov_b32 v{7+i}, s{64+2*i}")
    a("""
    v_mov_b32 v15, s64
    v_mov_b32 v16, 0
    s_mov_b64 exec, 1
    global_store_dwordx4 v16, v[8:11], s[50:51]
    global_store_dwordx4 v16, v[12:15], s[50:51] offset:16
    v_mov_b32 v18, s80
    v_mov_b32 v19, s82
    global_store_dwordx2 v16, v[18:19], s[50:51] offset:32
    """)

class Loop:
    def __init__(s,a,name,NS,STG,ACC,XF,WF,vXa,vWa,xoffs,ndma,dma_fn,sC,sStg,early=False):
        s.__dict__.update(locals())
    def reads(s,buf,ks):
        r=[]
        for tt in range(2): r.append(f"ds_read_b128 {vr(s.XF[buf][tt],4)}, v{s.vXa[ks%len(s.vXa)]} offset:{s.xoffs(tt,ks)}")
        for ct in range(2):
            for sec in range(2): r.append(f"ds_read_b64_tr_b16 {vr(s.WF[buf][ct]+2*sec,2)}, v{s.vWa[ct]} offset:{ks*4096+sec*1024}")
        return [r[0],r[2],r[3],r[4],r[5],r[1]]
    def mfmas(s,buf,swap):
        m=[]
        for tt,ct in ((0,0),(0,1),(1,1),(1,0)):
            A,B=(s.XF[buf][tt],s.WF[buf][ct]) if swap else (s.WF[buf][ct],s.XF[buf][tt])
            d=vr(s.ACC[tt][ct],16)
            m.append(f"v_mfma_f32_32x32x16_bf16 {d}, {vr(A,4)}, {vr(B,4)}, {d}")
        return m
    def prologue_reads(s):
        for ks in range(2):
            for x in s.reads(ks,ks): s.a(x)
    def chunk(s,swap,dma,vm,last=False,barpos=1,hook=None):
        a=s.a
        G=s.dma_fn(groups=True) if dma else None
        slots={0:[],1:[],3:[]}
        if dma:
            loads=G[1:]
            slots[0]=[G[0]+loads[0],loads[1],loads[2]]; slots[1]=[loads[3],loads[4],loads[5]]
        for ks in range(4):
            m=s.mfmas(ks,swap)
            if ks==2:
                a("s_waitcnt lgkmcnt(0)")
                for i in range(barpos): a(m[i])
                if not last:
                    a(f"""
                    s_mov_b32 s{s.sStg+3}, s{s.sStg}
                    s_add_u32 s{s.sStg}, s{s.sStg}, {s.STG}
                    s_cmp_eq_u32 s{s.sStg}, {s.STG*s.NS}
                    s_cselect_b32 s{s.sStg}, 0, s{s.sStg}
                    s_sub_u32 s{s.sStg+2}, s{s.sStg}, s{s.sStg+3}
                    """)
                    for v in s.vXa+s.vWa: a(f"v_add_u32 v{v}, s{s.sStg+2}, v{v}")
                    a(f"s_waitcnt vmcnt({vm})\ns_barrier")
                    r=s.reads(0,0)
                    if hook: r=r+[hook]
                else: r=[]
                rest=m[barpos:]
                for i,x in enumerate(rest):
                    k0=i*len(r)//len(rest); k1=(i+1)*len(r)//len(rest)
                    for y in r[k0:k1]: a(y)
                    a(x)
                continue
            if ks<2: a("s_waitcnt lgkmcnt(6)")
            r=s.reads((ks+2)&3,(ks+2)&3) if not (last and ks==3) else []
            d=slots[ks]
            a(m[0])
            for y in r[0:2]: a(y)
            if d:
                for l in d[0]: a(l)
            a(m[1])
            for y in r[2:4]: a(y)
            if d:
                for l in d[1]: a(l)
            a(m[2])
            for y in r[4:6]: a(y)
            if d:
                for l in d[2]: a(l)
            if ks==3 and dma: a(f"s_add_u32 s{s.sC}, s{s.sC}, 1\ns_cmp_lg_u32 s{s.sC}, 8")
            a(m[3])
    def emit(s,tag,swap,barpos=1,hook1=None,hook2=None):
        a=s.a; L=f"L_{s.name}_{tag}"
        a(".p2align 5"); a(f"{L}:")
        s.chunk(swap,True,s.ndma,barpos=barpos,hook=hook1)
        a(f"s_cbranch_scc1 {L}")
        s.chunk(swap,False,0,barpos=barpos,hook=hook2)
        s.chunk(swap,False,0,last=True,barpos=barpos)

def w_frag_addr(a, vWa, vLane, vT, sRun, wbase):
    a(f"""
    v_lshrrev_b32 v{vT}, 4, v{vLane}
    v_and_b32 v{vT+1}, 1, v{vT}
    v_and_b32 v{vT+2}, 3, v{vLane}
    v_lshl_add_u32 v{vT+1}, v{vT+1}, 2, v{vT+2}
    v_lshlrev_b32 v{vT+1}, 3, v{vT+1}
    v_bfe_u32 v{vT+2}, v{vLane}, 2, 2
    v_lshrrev_b32 v{vT}, 1, v{vT}
    v_lshl_add_u32 v{vT}, v{vT}, 3, v{vT+2}
    v_lshlrev_b32 v{vT}, 8, v{vT}
    v_add_u32 v{vT}, {wbase}, v{vT}
    v_lshlrev_b32 v{vT+2}, 6, v{vT+2}
    """)
    for ct in range(2):
        a(f"""
        v_lshrrev_b64 v[{vT+4}:{vT+5}], v{vT+1}, s[{sRun+4*ct}:{sRun+4*ct+1}]
        v_and_b32 v{vT+4}, 31, v{vT+4}
        v_lshlrev_b32 v{vT+4}, 3, v{vT+4}
        v_xor_b32 v{vT+4}, v{vT+4}, v{vT+2}
        v_add_u32 v{vWa[ct]}, v{vT}, v{vT+4}
        """)

def post_flags(t, flags):
    if "nomfma" in flags: t="\n".join(l for l in t.split("\n") if "v_mfma" not in l and "ds_read" not in l)+"\n"
    if "nodma" in flags: t="\n".join(l for l in t.split("\n") if " lds" not in l)+"\n"
    if "nostore" in flags: t="\n".join(l for l in t.split("\n") if "buffer_store" not in l)+"\n"
    if "sc1x4" in flags: t="\n".join(l+" sc1" if "buffer_store_dwordx4" in l else l for l in t.split("\n"))+"\n"
    if "ntx" in flags: t="\n".join(l.replace(" offen"," offen nt") if "buffer_load" in l and "s[8:11]" in l else l for l in t.split("\n"))+"\n"
    if "ntw" in flags: t="\n".join(l.replace(" offen"," offen nt") if "buffer_load" in l and "s[12:15]" in l else l for l in t.split("\n"))+"\n"
    if "s1x" in flags: t="\n".join(l.replace(" offen"," offen sc1") if "buffer_load" in l and "s[8:11]" in l else l for l in t.split("\n"))+"\n"
    for f,sfx in (("sc1"," sc1"),("nt"," nt"),("sc01"," sc0 sc1"),("sc1nt"," sc1 nt")):
        if f in flags: t="\n".join(l+sfx if "buffer_store" in l else l for l in t.split("\n"))+"\n"
    return t

def wot_prep(a,name,vLane,sW,sBlk):
    vT=8; vWd=[[16+u for u in range(5)],[21+u for u in range(5)]]; vWa=26; vL16=27; F=28
    sWm=12; sD=16
    a(f"""
    s_mul_i32 s35, s{sBlk}, 24
    s_add_u32 s36, s0, s35
    s_addc_u32 s37, s1, 0
    s_load_dwordx2 s[6:7], s[36:37], 16
    s_lshl_b32 s33, s61, 1
    s_add_u32 s33, s33, s60
    s_sub_u32 s33, s33, 30
    s_mul_i32 s26, s33, 160
    s_lshl_b32 s34, s{sBlk}, 3
    s_add_u32 s34, s34, s33
    s_mul_i32 s34, s34, {WOT_IMG}
    s_add_u32 s34, s34, {WOT_OFF}
    s_add_u32 s{sD}, s38, s34
    s_addc_u32 s{sD+1}, s39, 0
    s_mov_b32 s{sD+2}, {WOT_IMG}
    s_mov_b32 s{sD+3}, 0x20000
    s_mov_b32 s{sWm+2}, {640*1280}
    s_mov_b32 s{sWm+3}, 0x20000
    v_lshlrev_b32 v{vL16}, 4, v{vLane}
    """)
    for u in range(5):
        a(f"""
        v_add_u32 v{vT+2}, {64*u}, v{vLane}
        v_mul_u32_u24 v{vT+3}, 6554, v{vT+2}
        v_lshrrev_b32 v{vT+3}, 16, v{vT+3}
        v_mul_u32_u24 v{vT+4}, 10, v{vT+3}
        v_sub_u32 v{vT+2}, v{vT+2}, v{vT+4}
        v_lshlrev_b32 v{vT+2}, 4, v{vT+2}
        v_lshrrev_b32 v{vT+4}, 4, v{vT+3}
        v_bfe_u32 v{vT+5}, v{vT+3}, 2, 1
        v_mul_u32_u24 v{vT+5}, 10, v{vT+5}
        v_bfe_u32 v{vT+6}, v{vT+3}, 3, 1
        v_and_b32 v{vT+7}, 3, v{vT+3}
        v_lshl_add_u32 v{vT+1}, v{vT+6}, 2, v{vT+7}
        v_mad_u32_u24 v{vT+7}, v{vT+4}, 20, v{vT+5}
        v_add_u32 v{vT+7}, v{vT+7}, v{vT+1}
        v_mul_u32_u24 v{vT+7}, 1280, v{vT+7}
        v_add_u32 v{vWd[0][u]}, v{vT+7}, v{vT+2}
        v_mul_u32_u24 v{vT+4}, 80, v{vT+4}
        v_add_u32 v{vT+4}, v{vT+4}, v{vT+5}
        v_mad_u32_u24 v{vT+4}, v{vT+6}, 40, v{vT+4}
        v_bfe_u32 v{vT+5}, v{vT+3}, 1, 1
        v_mad_u32_u24 v{vT+4}, v{vT+5}, 20, v{vT+4}
        v_and_b32 v{vT+5}, 1, v{vT+3}
        v_add3_u32 v{vT+4}, v{vT+4}, v{vT+5}, 8
        v_mul_u32_u24 v{vT+4}, 1280, v{vT+4}
        v_add_u32 v{vWd[1][u]}, v{vT+4}, v{vT+2}
        """)
    a(f"""
    v_lshrrev_b32 v{vT}, 4, v{vLane}
    v_lshrrev_b32 v{vT+2}, 1, v{vT}
    v_lshlrev_b32 v{vT+2}, 4, v{vT+2}
    v_and_b32 v{vT+3}, 1, v{vT}
    v_lshl_add_u32 v{vT+2}, v{vT+3}, 2, v{vT+2}
    v_bfe_u32 v{vT+3}, v{vLane}, 2, 2
    v_add_u32 v{vT+2}, v{vT+2}, v{vT+3}
    v_mul_u32_u24 v{vT+2}, 160, v{vT+2}
    v_and_b32 v{vT+3}, 3, v{vLane}
    v_lshl_add_u32 v{vWa}, v{vT+3}, 3, v{vT+2}
    s_mul_i32 s27, s{sW}, 5120
    v_add_u32 v{vWa}, s27, v{vWa}
    s_mul_i32 s34, s{sW}, {40*1280}
    s_add_u32 s34, s34, s26
    s_add_u32 s35, s34, {320*1280}
    s_mul_i32 s36, s{sW}, {160*1280}
    s_add_u32 s36, s36, s26
    s_waitcnt lgkmcnt(0)
    s_mov_b32 s{sWm}, s6
    s_mov_b32 s{sWm+1}, s7
    """)
    def stage(r):
        for u in range(5):
            a(f"s_add_u32 m0, s27, {r*40960+u*1024}\ns_nop 0")
            a(f"buffer_load_dwordx4 v{vWd[r==2][u]}, s[{sWm}:{sWm+3}], s{34+r} offen lds")
    def out(r):
        for c in range(5):
            for sec in range(2): a(f"ds_read_b64_tr_b16 {vr(F+20*r+4*c+2*sec,2)}, v{vWa} offset:{sec*1280+c*32}")
        a(f"v_add_u32 v{vWa}, 40960, v{vWa}\ns_add_u32 s37, s27, {r*40960}\ns_add_u32 s33, s37, 4096\ns_waitcnt lgkmcnt(0)")
        for c in range(5):
            a(f"buffer_store_dwordx4 {vr(F+20*r+4*c,4)}, v{vL16}, s[{sD}:{sD+3}], {'s37' if c<4 else 's33'} offen offset:{(c&3)*1024}")
    stage(0); stage(1)
    a(f"s_cmp_ge_u32 s{sW}, 4\ns_cbranch_scc1 L_{name}_w2")
    stage(2)
    a("s_waitcnt vmcnt(0)")
    out(0); out(1); out(2)
    a(f"s_endpgm\nL_{name}_w2:\ns_waitcnt vmcnt(0)")
    out(0); out(1)

def gen_qkv(name="qkv_kernel", stamp=False, rot=1, flags=(), pf='', early=True, barpos=1):
    a=Asm(); kernel_header(a,name)
    def ST(i):
        if stamp: a(f"s_memtime s[{64+2*i}:{65+2*i}]"+("\ns_memrealtime s[80:81]" if i==0 else ""))
    NS=3; STG=49152
    vLane=1; vXa=[2,3,4,5]; vWa=[6,7]; vT=8
    vXd=[16,17,18,19]; vWd=[20,21]; vPf=160
    XF=[[24+16*b,28+16*b] for b in range(4)]; WF=[[32+16*b,36+16*b] for b in range(4)]
    ACC=[[88,104],[120,136]]; vSt=152; NV=162
    sX=8; sWm=12; sD=16; sW=20; sC=21; sStg=84
    sXo=25; sWo=26; sKc=27; sTab=40
    sBlk=28; sTb=29; sCb=30; sTyp=31; sM=22; sMask=48
    sGo=56; sScale=58
    a(f"""
    s_cmp_ge_u32 s2, 256
    s_cbranch_scc1 L_{name}_end
    s_lshr_b32 s33, s2, 3
    s_and_b32 s34, s2, 7
    s_lshr_b32 s{sBlk}, s34, 2
    s_mul_i32 s35, s{sBlk}, 24
    s_add_u32 s36, s0, s35
    s_addc_u32 s37, s1, 0
    s_load_dwordx4 s[4:7], s[36:37], 0
    s_load_dwordx2 s[38:39], s[0:1], 64
    """)
    ST(0)
    a(f"""
    v_and_b32 v{vLane}, 63, v0
    v_lshrrev_b32 v{vT}, 6, v0
    s_and_b32 s34, s34, 3
    v_readfirstlane_b32 s{sW}, v{vT}
    s_mov_b32 s60, s33
    s_mov_b32 s61, s34
    s_cmp_ge_u32 s33, 15
    s_cselect_b32 s35, 15, 0
    s_cselect_b32 s{sTb}, 1, 0
    s_sub_u32 s33, s33, s35
    s_lshl_b32 s35, s34, 1
    s_add_u32 s{sTb}, s{sTb}, s35
    s_mul_i32 s{sTyp}, s33, 52
    s_lshr_b32 s{sTyp}, s{sTyp}, 8
    s_mul_i32 s35, s{sTyp}, 5
    s_sub_u32 s{sCb}, s33, s35
    s_mul_i32 s{sKc}, s34, 5
    s_lshr_b32 s{sKc}, s{sKc}, 1
    """)
    if rot==0: a(f"s_mov_b32 s{sKc}, 0")
    a.c("s33 = column block 0..14, sTb = token block, sTyp 0/1/2 = Q/K/V, sCb = block inside the type, sKc = first k chunk")
    a(f"""
    s_cmp_ge_u32 s{sTyp}, 2
    s_cselect_b32 s35, 5, s{sCb}
    s_lshl_b32 s35, s35, 1
    s_and_b32 s36, s{sW}, 1
    s_add_u32 s35, s35, s36
    s_lshl_b32 s35, s35, 5
    s_getpc_b64 s[36:37]
    L_{name}_pc:
    s_add_u32 s36, s36, L_{name}_tab-L_{name}_pc
    s_addc_u32 s37, s37, 0
    s_add_u32 s36, s36, s35
    s_addc_u32 s37, s37, 0
    s_load_dwordx8 s[{sTab}:{sTab+7}], s[36:37], 0
    s_mul_i32 s{sXo}, s{sTb}, {256*1280}
    s_lshl_b32 s{sWo}, s33, 8
    s_mov_b32 s{sX+2}, {2048*1280}
    s_mov_b32 s{sX+3}, 0x20000
    s_mov_b32 s{sWm+2}, {640*3840}
    s_mov_b32 s{sWm+3}, 0x20000
    """)
    a.c("DMA source offsets")
    a(f"""
    v_lshrrev_b32 v{vT}, 3, v{vLane}
    s_lshl_b32 s35, s{sW}, 5
    v_add_u32 v{vT}, s35, v{vT}
    v_mul_u32_u24 v{vT}, 1280, v{vT}
    v_lshrrev_b32 v{vT+1}, 4, v{vLane}
    v_and_b32 v{vT+2}, 7, v{vLane}
    v_xor_b32 v{vT+2}, v{vT+2}, v{vT+1}
    v_lshl_add_u32 v{vXd[0]}, v{vT+2}, 4, v{vT}
    v_xor_b32 v{vT+2}, 4, v{vT+2}
    v_lshl_add_u32 v{vXd[1]}, v{vT+2}, 4, v{vT}
    v_add_u32 v{vXd[1]}, {8*1280}, v{vXd[1]}
    v_add_u32 v{vXd[2]}, {16*1280}, v{vXd[0]}
    v_add_u32 v{vXd[3]}, {16*1280}, v{vXd[1]}
    s_lshl_b32 s35, s{sW}, 3
    v_add_u32 v{vT}, s35, v{vT+1}
    v_mul_u32_u24 v{vT}, 3840, v{vT}
    v_and_b32 v{vT+2}, 15, v{vLane}
    v_lshlrev_b32 v{vT+1}, 2, v{vT+1}
    v_xor_b32 v{vT+2}, v{vT+2}, v{vT+1}
    v_lshl_add_u32 v{vWd[0]}, v{vT+2}, 4, v{vT}
    v_add_u32 v{vWd[1]}, {4*3840}, v{vWd[0]}
    s_lshl_b32 s{sM}, s{sW}, 12
    s_lshl_b32 s{sM+1}, s{sW}, 11
    s_add_u32 s{sM+1}, s{sM+1}, 32768
    s_mov_b32 s{sStg}, 0
    """)
    npf=0
    if pf:
        a.c("sequential first touch of this XCD's share of x (512 rows) and W (160 rows): 1/32 of it per workgroup, one dword per 64 bytes")
        a(f"""
        v_lshlrev_b32 v{vT+4}, 6, v0
        v_mov_b32 v{vT+5}, 0x7f000000
        v_cmp_gt_u32 vcc, 320, v0
        s_mul_i32 s62, s61, {512*1280}
        s_mul_i32 s35, s60, 20480
        s_add_u32 s62, s62, s35
        s_mul_i32 s63, s61, {160*3840}
        s_mul_i32 s35, s60, 19200
        s_add_u32 s63, s63, s35
        v_cndmask_b32 v{vT+4}, v{vT+5}, v{vT+4}, vcc
        """)
    a(f"""
    s_waitcnt lgkmcnt(0)
    s_mov_b32 s{sX}, s4
    s_mov_b32 s{sX+1}, s5
    s_mov_b32 s{sWm}, s6
    s_mov_b32 s{sWm+1}, s7
    """)
    def prefetch():
        a(f"""
        s_cmp_ge_u32 s{sW}, 5
        s_cbranch_scc1 L_{name}_npf{len(a.lines)}
        """)
        lab=a.lines[-1].split()[-1]
        a(f"""
        buffer_load_dword v{vPf}, v{vT+4}, s[{sX}:{sX+3}], s62 offen
        buffer_load_dword v{vPf+1}, v{vT+4}, s[{sWm}:{sWm+3}], s63 offen
        {lab}:
        """)
    a(f"s_cmp_ge_u32 s60, 30\ns_cbranch_scc1 L_{name}_idle")
    def dma(stg=None, groups=False):
        st=f"s{sStg+3}" if stg is None else str(stg*STG)
        G=[[f"s_lshl_b32 s34, s{sKc}, 7", f"s_add_u32 s34, s34, s{sXo}", f"s_mul_i32 s35, s{sKc}, {64*3840}",
            f"s_add_u32 s35, s35, s{sWo}", f"s_add_u32 s36, s{sM}, {st}", f"s_add_u32 s37, s{sM+1}, {st}",
            f"s_add_u32 s{sKc}, s{sKc}, 1", f"s_cmp_eq_u32 s{sKc}, 10", f"s_cselect_b32 s{sKc}, 0, s{sKc}"]]
        for k,i in [("x",0),("w",0),("x",1),("w",1),("x",2),("x",3)]:
            g=[f"s_add_u32 m0, s{36 if k=='x' else 37}, {i*1024}", "s_nop 0"]
            if k=="x": g.append(f"buffer_load_dwordx4 v{vXd[i]}, s[{sX}:{sX+3}], s34 offen lds")
            else: g.append(f"buffer_load_dwordx4 v{vWd[i]}, s[{sWm}:{sWm+3}], s35 offen lds")
            G.append(g)
        if groups: return G
        for g in G:
            for l in g: a(l)
    def pfl():
        if "x" in pf: a(f"buffer_load_dword v{vPf}, v{vT+4}, s[{sX}:{sX+3}], s62 offen")
        if "w" in pf: a(f"buffer_load_dword v{vPf+1}, v{vT+4}, s[{sWm}:{sWm+3}], s63 offen")
    if "f" in pf: pfl()
    dma(0)
    if pf and "f" not in pf:
        pfl(); npf=len(pf)
    ST(1)
    a.c("fragment addresses")
    a(f"""
    v_and_b32 v{vT}, 31, v{vLane}
    s_lshr_b32 s35, s{sW}, 1
    s_lshl_b32 s35, s35, 13
    v_lshlrev_b32 v{vT+1}, 7, v{vT}
    v_add_u32 v{vT+1}, s35, v{vT+1}
    v_bfe_u32 v{vT+2}, v{vT}, 1, 3
    v_lshrrev_b32 v{vT+3}, 5, v{vLane}
    v_xor_b32 v{vT+2}, v{vT+2}, v{vT+3}
    v_lshl_add_u32 v{vXa[0]}, v{vT+2}, 4, v{vT+1}
    v_xor_b32 v{vXa[1]}, 32, v{vXa[0]}
    v_xor_b32 v{vXa[2]}, 64, v{vXa[0]}
    v_xor_b32 v{vXa[3]}, 96, v{vXa[0]}
    """)
    w_frag_addr(a,vWa,vLane,vT,sTab,32768)
    for tt in range(2):
        for ct in range(2):
            for j in range(16): a(f"v_mov_b32 v{ACC[tt][ct]+j}, 0")
    dma(1)
    lp=Loop(a,name,NS,STG,ACC,XF,WF,vXa,vWa,lambda tt,ks:tt*4096,6,dma,sC,sStg,early)
    a(f"s_mov_b32 s{sC}, 0\ns_cmp_eq_u32 s{sTyp}, 2\ns_cbranch_scc1 L_{name}_v")
    a.c("destination: s[sD] = ws + base(type) + blk*32*IMG ; s34 = IMG ; sGo = group offset")
    a(f"""
    s_lshl_b32 s34, {Q_IMG}, s{sTyp}
    s_lshl_b32 s35, 5120, s{sTyp}
    s_cmp_eq_u32 s{sTyp}, 0
    s_cselect_b32 s36, {Q_OFF}, {KV_OFF}
    s_mov_b32 s{sScale}, {f32bits(QSCALE):#x}
    s_mov_b32 s{sScale+1}, {f32bits(QSCALE):#x}
    s_lshl_b32 s{sD+2}, s34, 5
    s_mov_b32 s{sD+3}, 0x20000
    s_mul_i32 s37, s{sD+2}, s{sBlk}
    s_add_u32 s36, s36, s37
    s_add_u32 s{sD}, s38, s36
    s_addc_u32 s{sD+1}, s39, 0
    s_lshl_b32 s36, s{sTb}, 1
    s_lshr_b32 s37, s{sW}, 2
    s_add_u32 s36, s36, s37
    s_mul_i32 s{sGo}, s35, s36
    s_bfe_u32 s36, s{sW}, 0x10001
    s_lshl_b32 s37, s36, 9
    s_add_u32 s37, s37, 4096
    s_lshl_b32 s36, s36, 11
    v_and_b32 v{vT}, 0x13, v{vLane}
    v_bfe_u32 v{vT+1}, v{vLane}, 2, 1
    v_lshl_or_b32 v{vT}, v{vT+1}, 3, v{vT}
    v_bfe_u32 v{vT+1}, v{vLane}, 3, 1
    v_lshl_or_b32 v{vT}, v{vT+1}, 2, v{vT}
    v_lshlrev_b32 v{vT}, 4, v{vT}
    v_lshrrev_b32 v{vT+1}, 5, v{vLane}
    v_lshlrev_b32 v{vT+1}, 4, v{vT+1}
    """)
    a.c("vT = kappa*16, vT+1 = 16*h (bit position of this half's two table bytes)")
    for ct in range(2):
        for qp in range(2):
            sd=sTab+4*ct+2+qp; n=2*ct+qp; mk=f"s[{sMask+2*n}:{sMask+2*n+1}]"
            a(f"""
            v_lshrrev_b32 v{vT+2}, v{vT+1}, s{sd}
            v_and_b32 v{vT+3}, 31, v{vT+2}
            v_mul_lo_u32 v{vT+3}, v{vT+3}, s34
            v_bfe_u32 v{vT+6}, v{vT+2}, 8, 5
            v_mul_lo_u32 v{vSt+2*n+1}, v{vT+6}, s34
            v_bfe_u32 v{vT+5}, v{vT+2}, 6, 1
            v_lshl_add_u32 v{vT+5}, v{vT+5}, 9, s36
            v_and_b32 v{vT+2}, 32, v{vT+2}
            v_cmp_ne_u32 {mk}, 0, v{vT+2}
            v_mov_b32 v{vT+6}, s37
            v_add_u32 v{vT+7}, 1024, v{vT+5}
            v_cndmask_b32 v{vT+5}, v{vT+5}, v{vT+6}, {mk}
            v_cndmask_b32 v{vT+7}, v{vT+7}, v{vT+6}, {mk}
            v_add3_u32 v{vSt+2*n}, v{vT+3}, v{vT+5}, v{vT}
            v_add3_u32 v{vSt+2*n+1}, v{vSt+2*n+1}, v{vT+7}, v{vT}
            """)
    def start():
        a(f"s_mov_b32 s{sStg+3}, {(NS-1)*STG}")
        ST(2)
        a(f"s_waitcnt vmcnt({6*(NS-2)+npf})\ns_barrier")
        ST(3)
        lp.prologue_reads()
    start()
    lp.emit("qk",False,barpos)
    ST(4)
    a(f"s_cmp_lg_u32 s{sTyp}, 0\ns_nop 6\ns_waitcnt lgkmcnt(0)\ns_cbranch_scc1 L_{name}_nsc")
    for ct in range(2):
        for tt in range(2):
            b=ACC[tt][ct]
            for j in range(0,16,2): a(f"v_pk_mul_f32 {vr(b+j,2)}, {vr(b+j,2)}, s[{sScale}:{sScale+1}]")
    a(f"L_{name}_nsc:")
    P=24
    for ct in range(2):
        for qp in range(2):
            n=2*ct+qp; st=P+8*n; mk=f"s[{sMask+2*n}:{sMask+2*n+1}]"
            b0=ACC[0][ct]+8*qp; b1=ACC[1][ct]+8*qp
            for k in range(2):
                a(f"v_cvt_pk_bf16_f32 v{st+k}, v{b0+2*k}, v{b0+2*k+1}")
                a(f"v_cvt_pk_bf16_f32 v{b0+k}, v{b0+4+2*k}, v{b0+5+2*k}")
            for k in range(2):
                a(f"v_cvt_pk_bf16_f32 v{b0+2+k}, v{b1+2*k}, v{b1+2*k+1}")
                a(f"v_cvt_pk_bf16_f32 v{st+6+k}, v{b1+4+2*k}, v{b1+5+2*k}")
            for k in range(2):
                a(f"v_cndmask_b32 v{st+2+k}, v{b0+k}, v{b0+2+k}, {mk}")
                a(f"v_cndmask_b32 v{st+4+k}, v{b0+2+k}, v{b0+k}, {mk}")
            a(f"buffer_store_dwordx4 {vr(st,4)}, v{vSt+2*n}, s[{sD}:{sD+3}], s{sGo} offen")
            a(f"buffer_store_dwordx4 {vr(st+4,4)}, v{vSt+2*n+1}, s[{sD}:{sD+3}], s{sGo} offen")
    a(f"s_branch L_{name}_done")
    a(f"L_{name}_v:")
    a(f"""
    s_mov_b32 s{sD+2}, {32*KV_IMG}
    s_mov_b32 s{sD+3}, 0x20000
    s_mul_i32 s37, s{sBlk}, {32*KV_IMG}
    s_add_u32 s{sD}, s38, s37
    s_addc_u32 s{sD+1}, s39, 0
    s_lshl_b32 s36, s{sTb}, 1
    s_lshr_b32 s37, s{sW}, 2
    s_add_u32 s36, s36, s37
    s_mul_i32 s35, s36, 10240
    s_bfe_u32 s36, s{sW}, 0x10001
    s_mul_i32 s36, s36, 2560
    s_add_u32 s35, s35, s36
    s_add_u32 s{sGo}, s35, 5120
    s_lshl_b32 s36, s{sCb}, 7
    s_and_b32 s37, s{sW}, 1
    s_lshl_b32 s37, s37, 6
    s_add_u32 s36, s36, s37
    s_mov_b32 s34, {KV_IMG}
    v_and_b32 v{vT}, 31, v{vLane}
    v_add_u32 v{vT}, s36, v{vT}
    v_lshrrev_b32 v{vT+1}, 5, v{vLane}
    v_mul_u32_u24 v{vT+1}, 320, v{vT+1}
    """)
    for ct in range(2):
        a(f"""
        v_mul_u32_u24 v{vT+2}, 3277, v{vT}
        v_lshrrev_b32 v{vT+2}, 16, v{vT+2}
        v_mul_u32_u24 v{vT+3}, 20, v{vT+2}
        v_sub_u32 v{vT+3}, v{vT}, v{vT+3}
        v_mul_lo_u32 v{vT+2}, v{vT+2}, s34
        v_add_u32 v{vT+4}, 6, v{vT+3}
        v_cmp_gt_u32 vcc, 4, v{vT+3}
        v_subrev_u32 v{vT+5}, 10, v{vT+3}
        v_add_u32 v{vT}, 32, v{vT}
        v_cndmask_b32 v{vT+4}, v{vT+4}, v{vT+3}, vcc
        v_cmp_lt_u32 vcc, 13, v{vT+3}
        v_add_u32 v{vT+2}, v{vT+2}, v{vT+1}
        s_nop 0
        v_cndmask_b32 v{vT+4}, v{vT+4}, v{vT+5}, vcc
        v_lshl_add_u32 v{vSt+ct}, v{vT+4}, 4, v{vT+2}
        """)
    start()
    lp.emit("vv",True,barpos)
    ST(4)
    a("s_nop 7")
    for tt,ct in ((0,0),(0,1),(1,1),(1,0)):
        b=ACC[tt][ct]
        for j in range(8): a(f"v_cvt_pk_bf16_f32 v{b+j}, v{b+2*j}, v{b+2*j+1}")
        for s in range(2):
            a(f"buffer_store_dwordx4 {vr(b+4*s,4)}, v{vSt+ct}, s[{sD}:{sD+3}], s{sGo} offen offset:{tt*1280+s*640}")
    a(f"L_{name}_done:")
    ST(5); ST(6)
    if stamp: stamp_store(a,3,sW,64<<20)
    a("s_endpgm")
    a(f"L_{name}_idle:")
    pfl()
    wot_prep(a,name,vLane,sW,sBlk)
    a(f"L_{name}_end:\ns_endpgm")
    a(".p2align 5")
    a(f"L_{name}_tab:")
    for c,row in tables.table():
        for runs,dest in row:
            a(".byte "+", ".join(str(x) for x in runs+dest))
    a(".p2align 2")
    return post_flags(a.text(),flags), kernel_desc(name,NV,96)
```

```python
import numpy as np
from asmlib import *
def f2bf(x):
    u=np.ascontiguousarray(x,dtype=np.float32).view(np.uint32)
    return ((u+0x7fff+((u>>16)&1))>>16).astype(np.uint16)
import os
def head_runs(h):
    if os.environ.get("K4","1")=="1":
        import tables2
        return tables2.head_runs(h)
    if h==19: return dict(p0=(1,2),p1=(3,4),ex=0)
    if h==25: return dict(p0=(0,1),p1=(3,4),ex=2)
    return dict(p0=(0,1),p1=(2,3),ex=4)
def build_images(qkv):
    img=np.zeros(O_OFF//2,np.uint16)
    sw=np.array([swap23(i) for i in range(32)])
    for b in range(2):
        y=qkv[b].reshape(2048,3,32,20)
        for h in range(32):
            p=b*32+h; hr=head_runs(h)
            cols=lambda rs:[4*r+j for r in rs for j in range(4)]
            for typ,base,gs in ((0,Q_OFF+p*Q_IMG,5120),(1,KV_OFF+p*KV_IMG,10240)):
                m=f2bf(y[:,typ,h,:]*(np.float32(QSCALE) if typ==0 else np.float32(1)))
                m=m.reshape(16,4,32,20)[:,:,sw,:]
                for g in range(16):
                    o=(base+g*gs)//2
                    for t in range(4):
                        img[o+t*512:o+t*512+256]=m[g,t][:,cols(hr['p0'])].ravel()
                        img[o+t*512+256:o+t*512+512]=m[g,t][:,cols(hr['p1'])].ravel()
                    e=m[g][:,:,cols((hr['ex'],))]
                    k2=np.stack([np.concatenate([e[2*hh],e[2*hh+1]],axis=1) for hh in range(2)])
                    img[o+2048:o+2560]=k2.ravel()
            v=f2bf(y[:,2,h,:]).reshape(16,4,32,20)[:,:,sw,:]
            order=np.argsort([vslot(d) for d in range(20)])
            vv=v.reshape(16,4,4,8,20)[:,:,:,:,order].transpose(0,1,2,4,3)
            for g in range(16):
                o=(KV_OFF+p*KV_IMG+g*10240+5120)//2
                img[o:o+2560]=vv[g].ravel()
    return img.view(np.uint8)

def o_index():
    idx=np.zeros((2,2048,640),np.int64)
    tok=np.arange(2048); qt=tok>>5; i=np.array([swap23(t&31) for t in tok])
    for f in range(640):
        head=f//20; d=f%20; h=d//10; r=d%10
        if r<8: off=head*512+(h*32+i)*8+r
        else: off=(32+(head>>2))*512+(h*32+i)*8+(head&3)*2+(r-8)
        for b in range(2): idx[b,:,f]=b*(O_BLK//2)+qt*20480+off
    return idx
def decode_o(img): return img[o_index()]
def encode_o(o):
    img=np.zeros(O_BLK,np.uint16); img[o_index()]=o; return img
```

```python
from asmlib import *
import tables2
from gemm import Loop, w_frag_addr, f32bits

F1_OFF=(WS_USED+4095)//4096*4096
XT_OFF=F1_OFF+2048
F2_OFF=XT_OFF+2048
NAME="concat_heads__mha_block__mha_block__prompt_kernel"
sWS=88; sNon=90; sDbg=92; sWave=94
SPIN=1<<22

class Gen:
    def __init__(g, stamp=False, opt=None):
        g.a=Asm(); g.tail=Asm(); g.stamp=stamp; g.o=dict(opt or {}); g.nst=0
    def RT(g, i):
        if g.stamp:
            g.a(f"s_memrealtime s[96:97]\ns_waitcnt lgkmcnt(0)\nv_mov_b32 v{240+i}, s96")
    def sc(g, key):
        return g.o.get(key," sc1")

    def signal(g, a, off_s, tag, loc):
        a(f"""
        v_mov_b32 v8, s{off_s}
        v_mov_b32 v10, s{sNon}
        v_mov_b32 v11, s{sNon+1}
        s_mov_b64 exec, 1
        s_cmp_lg_u32 s{loc}, 0
        s_cbranch_scc1 L_sig_{tag}
        global_store_dwordx2 v8, v[10:11], s[{sWS}:{sWS+1}] sc1
        s_branch L_sigd_{tag}
        L_sig_{tag}:
        global_store_dwordx2 v8, v[10:11], s[{sWS}:{sWS+1}]
        L_sigd_{tag}:
        s_mov_b64 exec, -1
        """)
    def poll(g, a, voff, tag, vd):
        a(f"""
        s_mov_b32 s95, {SPIN}
        {"s_branch L_pollc_"+tag if g.o.get("spec"+tag,0) else ""}
        L_poll_{tag}:
        global_load_dwordx2 v[{vd}:{vd+1}], v{voff}, s[{sWS}:{sWS+1}] sc1
        s_waitcnt vmcnt(0)
        L_pollc_{tag}:
        v_cmp_eq_u64 vcc, s[{sNon}:{sNon+1}], v[{vd}:{vd+1}]
        s_sub_u32 s95, s95, 1
        s_cmp_eq_u64 vcc, -1
        s_cbranch_scc1 L_polled_{tag}
        {"s_sleep %d"%g.o["sleep"] if g.o.get("sleep") else ""}
        s_cmp_lg_u32 s95, 0
        s_cbranch_scc1 L_poll_{tag}
        L_polled_{tag}:
        """)
    def get_nonce(g, a, tag, vN):
        a(f"""
        s_mov_b32 s95, {SPIN}
        L_non_{tag}:
        v_readfirstlane_b32 s{sNon}, v{vN}
        v_readfirstlane_b32 s{sNon+1}, v{vN+1}
        s_sub_u32 s95, s95, 1
        s_nop 2
        s_cmp_lg_u32 s{sNon}, 0
        s_cbranch_scc1 L_nond_{tag}
        s_cmp_eq_u32 s95, 0
        s_cbranch_scc1 L_nond_{tag}
        v_mov_b32 v8, 0
        s_sleep 1
        global_load_dwordx2 v[{vN}:{vN+1}], v8, s[{sDbg}:{sDbg+1}] sc1
        s_waitcnt vmcnt(0)
        s_branch L_non_{tag}
        L_nond_{tag}:
        """)

    def local_flag(g, a, vX):
        if g.o.get("local","check")=="force": a("s_mov_b32 s63, 1"); return
        if g.o.get("local","check")=="off": a("s_mov_b32 s63, 0"); return
        a(f"""
        s_getreg_b32 s63, hwreg(HW_REG_XCC_ID, 0, 4)
        s_xor_b32 s42, s{sNon}, s63
        s_mov_b32 s43, s{sNon+1}
        v_cmp_eq_u64 vcc, s[42:43], v[{vX}:{vX+1}]
        s_cmp_lg_u32 s{sNon}, 0
        s_cselect_b32 s63, 1, 0
        s_cmp_eq_u64 vcc, -1
        s_cselect_b32 s63, s63, 0
        """)

    def flag1_addr(g, a):
        a(f"""
        s_and_b32 s40, s2, 7
        s_lshl_b32 s40, s40, 8
        s_add_u32 s40, s40, {F1_OFF}
        v_and_b32 v162, 31, v1
        v_lshl_add_u32 v162, v162, 3, s40
        """)

    def qkv(g):
        a=g.a; name="p1"; st=g.sc("st1")
        NS=3; STG=49152; barpos=g.o.get("barpos",1)
        vLane=1; vXa=[2,3,4,5]; vWa=[6,7]; vT=8
        vXd=[16,17,18,19]; vWd=[20,21]; vN=160
        XF=[[24+16*b,28+16*b] for b in range(4)]; WF=[[32+16*b,36+16*b] for b in range(4)]
        ACC=[[88,104],[120,136]]; vSt=152
        sX=8; sWm=12; sD=16; sW=sWave; sC=21; sStg=84
        sXo=25; sWo=26; sKc=27; sTab=40; sBlk=28; sTb=29; sCb=30; sTyp=31; sM=22; sMask=48; sGo=56; sScale=58; sFl=62
        a(f"""
        s_cmp_ge_u32 s2, 256
        s_cbranch_scc1 L_end
        s_lshr_b32 s33, s2, 3
        s_and_b32 s34, s2, 7
        s_lshr_b32 s{sBlk}, s34, 2
        s_mul_i32 s35, s{sBlk}, 24
        s_add_u32 s36, s0, s35
        s_addc_u32 s37, s1, 0
        s_load_dwordx4 s[4:7], s[36:37], 0
        s_load_dwordx2 s[{sWS}:{sWS+1}], s[0:1], 64
        s_load_dwordx2 s[{sDbg}:{sDbg+1}], s[0:1], 56
        """)
        if g.stamp: a("s_memrealtime s[96:97]")
        a(f"""
        v_and_b32 v{vLane}, 63, v0
        v_lshrrev_b32 v{vT}, 6, v0
        s_and_b32 s34, s34, 3
        v_readfirstlane_b32 s{sW}, v{vT}
        s_lshr_b32 s{sTb}, s33, 2
        s_and_b32 s{sCb}, s33, 3
        s_mov_b32 s61, s34
        """)
        a.c("s61 = head group, sTb = token block, sCb = column group, sTyp = half = 2*sCb + (wave&1), sKc = first k chunk")
        r1,r2,r3=g.o.get("rot",(0,0,0)); pf=""; lx=g.o.get("ldx",""); lw=g.o.get("ldw","")
        a(f"""
        s_mul_i32 s{sKc}, s61, {r3}
        s_lshr_b32 s{sKc}, s{sKc}, 1
        s_mul_i32 s35, s{sTb}, {r1}
        s_add_u32 s{sKc}, s{sKc}, s35
        s_mul_i32 s35, s{sCb}, {r2}
        s_add_u32 s{sKc}, s{sKc}, s35
        s_mul_i32 s35, s{sKc}, 26
        s_lshr_b32 s35, s35, 8
        s_mul_i32 s35, s35, 10
        s_sub_u32 s{sKc}, s{sKc}, s35
        s_and_b32 s35, s2, 7
        s_lshl_b32 s{sFl}, s35, 8
        s_and_b32 s35, s2, 0xf8
        s_add_u32 s{sFl}, s{sFl}, s35
        s_add_u32 s{sFl}, s{sFl}, {F1_OFF}
        s_lshl_b32 s{sTyp}, s{sCb}, 1
        s_and_b32 s36, s{sW}, 1
        s_add_u32 s{sTyp}, s{sTyp}, s36
        s_lshl_b32 s35, s{sTyp}, 5
        s_getpc_b64 s[36:37]
        L_pc:
        s_add_u32 s36, s36, L_tab-L_pc
        s_addc_u32 s37, s37, 0
        s_lshl_b32 s34, s{sCb}, 4
        s_add_u32 s34, s34, 256
        s_load_dwordx8 s[{sTab}:{sTab+7}], s[36:37], s35
        s_load_dwordx4 s[64:67], s[36:37], s34
        s_mul_i32 s{sXo}, s{sTb}, {256*1280}
        s_mul_i32 s{sWo}, s61, 320
        s_mov_b32 s{sX+2}, {2048*1280}
        s_mov_b32 s{sX+3}, 0x20000
        s_mov_b32 s{sWm+2}, {640*3840}
        s_mov_b32 s{sWm+3}, 0x20000
        """)
        assert r3*3//2+7*r1+3*r2<69
        a.c("DMA source offsets")
        a(f"""
        v_lshrrev_b32 v{vT}, 3, v{vLane}
        s_lshl_b32 s35, s{sW}, 5
        v_add_u32 v{vT}, s35, v{vT}
        v_mul_u32_u24 v{vT}, 1280, v{vT}
        v_lshrrev_b32 v{vT+1}, 4, v{vLane}
        v_and_b32 v{vT+2}, 7, v{vLane}
        v_xor_b32 v{vT+2}, v{vT+2}, v{vT+1}
        v_lshl_add_u32 v{vXd[0]}, v{vT+2}, 4, v{vT}
        v_xor_b32 v{vT+2}, 4, v{vT+2}
        v_lshl_add_u32 v{vXd[1]}, v{vT+2}, 4, v{vT}
        v_add_u32 v{vXd[1]}, {8*1280}, v{vXd[1]}
        v_add_u32 v{vXd[2]}, {16*1280}, v{vXd[0]}
        v_add_u32 v{vXd[3]}, {16*1280}, v{vXd[1]}
        s_lshl_b32 s35, s{sW}, 3
        v_add_u32 v{vT}, s35, v{vT+1}
        v_mul_u32_u24 v{vT}, 3840, v{vT}
        v_and_b32 v{vT+2}, 15, v{vLane}
        v_lshlrev_b32 v{vT+1}, 2, v{vT+1}
        v_xor_b32 v{vT+2}, v{vT+2}, v{vT+1}
        v_lshl_add_u32 v{vWd[0]}, v{vT+2}, 4, v{vT}
        s_lshl_b32 s{sM}, s{sW}, 12
        s_lshl_b32 s{sM+1}, s{sW}, 11
        s_add_u32 s{sM+1}, s{sM+1}, 32768
        s_mov_b32 s{sStg}, 0
        """)
        a(f"""
        s_waitcnt lgkmcnt(0)
        v_mov_b32 v{vT+3}, s65
        v_mov_b32 v{vT+4}, s66
        v_cmp_gt_u32 vcc, s64, v{vT+2}
        s_mov_b32 s{sX}, s4
        s_mov_b32 s{sX+1}, s5
        v_cndmask_b32 v{vT+3}, v{vT+4}, v{vT+3}, vcc
        s_mov_b32 s{sWm}, s6
        s_mov_b32 s{sWm+1}, s7
        v_add_u32 v{vWd[0]}, v{vWd[0]}, v{vT+3}
        v_add_u32 v{vWd[1]}, {4*3840}, v{vWd[0]}
        """)
        if g.stamp: a("v_mov_b32 v240, s96")
        a.c("workgroup 0 picks the tag of this launch")
        a(f"""
        s_lshl_b32 s34, s2, 3
        s_add_u32 s34, s34, s{sW}
        s_cmp_lg_u32 s34, 7
        s_cbranch_scc1 L_nt
        s_memrealtime s[34:35]
        s_waitcnt lgkmcnt(0)
        s_or_b32 s34, s34, 0x10
        v_mov_b32 v8, 0
        v_mov_b32 v10, s34
        v_mov_b32 v11, s35
        s_mov_b64 exec, 1
        global_store_dwordx2 v8, v[10:11], s[{sDbg}:{sDbg+1}] sc1
        s_mov_b64 exec, -1
        L_nt:
        """)
        def dma(stg=None, groups=False):
            stn=f"s{sStg+3}" if stg is None else str(stg*STG)
            G=[[f"s_lshl_b32 s34, s{sKc}, 7", f"s_add_u32 s34, s34, s{sXo}", f"s_mul_i32 s35, s{sKc}, {64*3840}",
                f"s_add_u32 s35, s35, s{sWo}", f"s_add_u32 s36, s{sM}, {stn}", f"s_add_u32 s37, s{sM+1}, {stn}",
                f"s_add_u32 s{sKc}, s{sKc}, 1", f"s_cmp_eq_u32 s{sKc}, 10", f"s_cselect_b32 s{sKc}, 0, s{sKc}"]]
            for k,i in [("x",0),("w",0),("x",1),("w",1),("x",2),("x",3)]:
                q=[f"s_add_u32 m0, s{36 if k=='x' else 37}, {i*1024}", "s_nop 0"]
                if k=="x": q.append(f"buffer_load_dwordx4 v{vXd[i]}, s[{sX}:{sX+3}], s34 offen{lx} lds")
                else: q.append(f"buffer_load_dwordx4 v{vWd[i]}, s[{sWm}:{sWm+3}], s35 offen{lw} lds")
                G.append(q)
            if groups: return G
            for q in G:
                for l in q: a(l)
        npf=0
        dma(0)
        a.c("fragment addresses")
        a(f"""
        v_and_b32 v{vT}, 31, v{vLane}
        s_lshr_b32 s35, s{sW}, 1
        s_lshl_b32 s35, s35, 13
        v_lshlrev_b32 v{vT+1}, 7, v{vT}
        v_add_u32 v{vT+1}, s35, v{vT+1}
        v_bfe_u32 v{vT+2}, v{vT}, 1, 3
        v_lshrrev_b32 v{vT+3}, 5, v{vLane}
        v_xor_b32 v{vT+2}, v{vT+2}, v{vT+3}
        v_lshl_add_u32 v{vXa[0]}, v{vT+2}, 4, v{vT+1}
        v_xor_b32 v{vXa[1]}, 32, v{vXa[0]}
        v_xor_b32 v{vXa[2]}, 64, v{vXa[0]}
        v_xor_b32 v{vXa[3]}, 96, v{vXa[0]}
        """)
        w_frag_addr(a,vWa,vLane,vT,sTab,32768)
        for tt in range(2):
            for ct in range(2):
                for j in range(16): a(f"v_mov_b32 v{ACC[tt][ct]+j}, 0")
        dma(1)
        lp=Loop(a,name,NS,STG,ACC,XF,WF,vXa,vWa,lambda tt,ks:tt*4096,6,dma,sC,sStg,True)
        a(f"s_mov_b32 s{sC}, 0\ns_cmp_ge_u32 s{sTyp}, 5\ns_cbranch_scc1 L_p1_v")
        a.c("destination per column tile: s[68+ct] = image stride, s[70+ct] = offset of (first head, key group); tile 0 is Q for halves 0..2, tile 1 for halves 0..1")
        a(f"""
        s_mov_b32 s{sScale}, {f32bits(QSCALE):#x}
        s_mov_b32 s{sScale+1}, {f32bits(QSCALE):#x}
        s_lshl_b32 s36, s{sTb}, 1
        s_lshr_b32 s37, s{sW}, 2
        s_add_u32 s36, s36, s37
        s_mul_i32 s36, s36, 5120
        s_lshl_b32 s35, s{sBlk}, 2
        s_add_u32 s35, s35, s61
        s_mul_i32 s35, s35, {8*Q_IMG}
        s_add_u32 s35, s35, s36
        s_lshl_b32 s34, s35, 1
        s_add_u32 s35, s35, {Q_OFF}
        s_mov_b32 s36, {Q_IMG}
        s_cmp_le_u32 s{sTyp}, 2
        s_cselect_b32 s68, s36, {KV_IMG}
        s_cselect_b32 s70, s35, s34
        s_cmp_le_u32 s{sTyp}, 1
        s_cselect_b32 s69, s36, {KV_IMG}
        s_cselect_b32 s71, s35, s34
        s_bfe_u32 s36, s{sW}, 0x10001
        s_lshl_b32 s37, s36, 9
        s_add_u32 s37, s37, 4096
        s_lshl_b32 s36, s36, 11
        v_and_b32 v{vT}, 0x13, v{vLane}
        v_bfe_u32 v{vT+1}, v{vLane}, 2, 1
        v_lshl_or_b32 v{vT}, v{vT+1}, 3, v{vT}
        v_bfe_u32 v{vT+1}, v{vLane}, 3, 1
        v_lshl_or_b32 v{vT}, v{vT+1}, 2, v{vT}
        v_lshlrev_b32 v{vT}, 4, v{vT}
        v_lshrrev_b32 v{vT+1}, 5, v{vLane}
        v_lshlrev_b32 v{vT+1}, 4, v{vT+1}
        """)
        for ct in range(2):
            for qp in range(2):
                sd=sTab+4*ct+2+qp; n=2*ct+qp; mk=f"s[{sMask+2*n}:{sMask+2*n+1}]"
                a(f"""
                v_lshrrev_b32 v{vT+2}, v{vT+1}, s{sd}
                v_and_b32 v{vT+3}, 31, v{vT+2}
                v_mul_lo_u32 v{vT+3}, v{vT+3}, s{68+ct}
                v_bfe_u32 v{vT+6}, v{vT+2}, 8, 5
                v_mul_lo_u32 v{vSt+2*n+1}, v{vT+6}, s{68+ct}
                v_bfe_u32 v{vT+5}, v{vT+2}, 6, 1
                v_lshl_add_u32 v{vT+5}, v{vT+5}, 9, s36
                v_and_b32 v{vT+2}, 32, v{vT+2}
                v_cmp_ne_u32 {mk}, 0, v{vT+2}
                v_mov_b32 v{vT+6}, s37
                v_add_u32 v{vT+7}, 1024, v{vT+5}
                v_cndmask_b32 v{vT+5}, v{vT+5}, v{vT+6}, {mk}
                v_cndmask_b32 v{vT+7}, v{vT+7}, v{vT+6}, {mk}
                v_add3_u32 v{vSt+2*n}, v{vT+3}, v{vT+5}, v{vT}
                v_add3_u32 v{vSt+2*n+1}, v{vSt+2*n+1}, v{vT+7}, v{vT}
                """)
        def start():
            g.flag1_addr(a)
            a(f"s_mov_b32 s{sD}, s{sWS}\ns_mov_b32 s{sD+1}, s{sWS+1}\ns_mov_b32 s{sD+2}, {O_OFF}\ns_mov_b32 s{sD+3}, 0x20000")
            a(f"s_mov_b32 s{sStg+3}, {(NS-1)*STG}\ns_waitcnt vmcnt({6*(NS-2)+npf})\ns_barrier")
            g.RT(1)
            lp.prologue_reads()
        def publish(tag):
            return f"""
            s_cmp_eq_u32 s{sNon}, 0
            s_cbranch_scc1 L_pub_{tag}
            s_getreg_b32 s34, hwreg(HW_REG_XCC_ID, 0, 4)
            s_xor_b32 s34, s34, s{sNon}
            s_and_b32 s35, s2, 7
            s_lshl_b32 s35, s35, 8
            s_and_b32 s36, s2, 0xf8
            s_add_u32 s35, s35, s36
            s_add_u32 s35, s35, {XT_OFF}
            v_mov_b32 v8, s35
            v_mov_b32 v10, s34
            v_mov_b32 v11, s{sNon+1}
            s_mov_b64 exec, 1
            global_store_dwordx2 v8, v[10:11], s[{sWS}:{sWS+1}] sc1
            s_mov_b64 exec, -1
            L_pub_{tag}:
            """
        g.publish=publish
        def hook1(tag):
            return f"""
            s_cmp_eq_u32 s{sC}, 2
            s_cbranch_scc0 L_h1_{tag}
            v_mov_b32 v8, 0
            global_load_dwordx2 v[{vN}:{vN+1}], v8, s[{sDbg}:{sDbg+1}] sc1
            L_h1_{tag}:
            s_cmp_eq_u32 s{sC}, 4
            s_cbranch_scc0 L_h2_{tag}
            v_readfirstlane_b32 s{sNon}, v{vN}
            v_readfirstlane_b32 s{sNon+1}, v{vN+1}
            s_cmp_lg_u32 s{sW}, 0
            s_cbranch_scc1 L_h2_{tag}
            """+publish(tag)+f"""
            L_h2_{tag}:
            """
        def xt_load(v):
            return f"""
            s_and_b32 s35, s2, 7
            s_lshl_b32 s35, s35, 8
            s_add_u32 s35, s35, {XT_OFF}
            v_and_b32 v8, 31, v{vLane}
            v_lshl_add_u32 v8, v8, 3, s35
            global_load_dwordx2 v[{v}:{v+1}], v8, s[{sWS}:{sWS+1}] sc1
            """
        g.xt_load=xt_load
        start()
        lp.emit("qk",False,barpos,hook1("qk"),xt_load(166))
        g.RT(2)
        a("s_waitcnt vmcnt(0)")
        g.local_flag(a,166)
        a(f"s_mov_b32 s57, s63\ns_nop 3")
        for ct in range(2):
            a(f"s_cmp_gt_u32 s{sTyp}, {2-ct}\ns_cbranch_scc1 L_p1_nsc")
            for tt in range(2):
                b=ACC[tt][ct]
                for j in range(0,16,2): a(f"v_pk_mul_f32 {vr(b+j,2)}, {vr(b+j,2)}, s[{sScale}:{sScale+1}]")
        a(f"L_p1_nsc:")
        a("s_cmp_lg_u32 s57, 0\ns_cbranch_scc1 L_p1_loc")
        for st in (st,""):
            P=24
            for ct in range(2):
                for qp in range(2):
                    n=2*ct+qp; sg=P+8*n; mk=f"s[{sMask+2*n}:{sMask+2*n+1}]"
                    b0=ACC[0][ct]+8*qp; b1=ACC[1][ct]+8*qp
                    for k in range(2):
                        a(f"v_cvt_pk_bf16_f32 v{sg+k}, v{b0+2*k}, v{b0+2*k+1}")
                        a(f"v_cvt_pk_bf16_f32 v{b0+k}, v{b0+4+2*k}, v{b0+5+2*k}")
                    for k in range(2):
                        a(f"v_cvt_pk_bf16_f32 v{b0+2+k}, v{b1+2*k}, v{b1+2*k+1}")
                        a(f"v_cvt_pk_bf16_f32 v{sg+6+k}, v{b1+4+2*k}, v{b1+5+2*k}")
                    for k in range(2):
                        a(f"v_cndmask_b32 v{sg+2+k}, v{b0+k}, v{b0+2+k}, {mk}")
                        a(f"v_cndmask_b32 v{sg+4+k}, v{b0+2+k}, v{b0+k}, {mk}")
                    a(f"buffer_store_dwordx4 {vr(sg,4)}, v{vSt+2*n}, s[{sD}:{sD+3}], s{70+ct} offen{st}")
                    a(f"buffer_store_dwordx4 {vr(sg+4,4)}, v{vSt+2*n+1}, s[{sD}:{sD+3}], s{70+ct} offen{st}")
            a("s_branch L_p1_done")
            if st: a("L_p1_loc:")
        st=g.sc("st1")
        a(f"L_p1_v:")
        a(f"""
        s_lshl_b32 s36, s{sTb}, 1
        s_lshr_b32 s37, s{sW}, 2
        s_add_u32 s36, s36, s37
        s_mul_i32 s35, s36, 10240
        s_bfe_u32 s36, s{sW}, 0x10001
        s_mul_i32 s36, s36, 2560
        s_add_u32 s35, s35, s36
        s_lshl_b32 s36, s{sBlk}, 2
        s_add_u32 s36, s36, s61
        s_mul_i32 s36, s36, {8*KV_IMG}
        s_add_u32 s35, s35, s36
        s_add_u32 s{sGo}, s35, 5120
        s_sub_u32 s36, s{sTyp}, 5
        s_lshl_b32 s36, s36, 6
        s_mov_b32 s34, {KV_IMG}
        v_and_b32 v{vT}, 31, v{vLane}
        v_add_u32 v{vT}, s36, v{vT}
        v_lshrrev_b32 v{vT+1}, 5, v{vLane}
        v_mul_u32_u24 v{vT+1}, 320, v{vT+1}
        """)
        for ct in range(2):
            a(f"""
            v_mul_u32_u24 v{vT+2}, 3277, v{vT}
            v_lshrrev_b32 v{vT+2}, 16, v{vT+2}
            v_mul_u32_u24 v{vT+3}, 20, v{vT+2}
            v_sub_u32 v{vT+3}, v{vT}, v{vT+3}
            v_mul_lo_u32 v{vT+2}, v{vT+2}, s34
            v_add_u32 v{vT+4}, 6, v{vT+3}
            v_cmp_gt_u32 vcc, 4, v{vT+3}
            v_subrev_u32 v{vT+5}, 10, v{vT+3}
            v_add_u32 v{vT}, 32, v{vT}
            v_cndmask_b32 v{vT+4}, v{vT+4}, v{vT+3}, vcc
            v_cmp_lt_u32 vcc, 13, v{vT+3}
            v_add_u32 v{vT+2}, v{vT+2}, v{vT+1}
            s_nop 0
            v_cndmask_b32 v{vT+4}, v{vT+4}, v{vT+5}, vcc
            v_lshl_add_u32 v{vSt+ct}, v{vT+4}, 4, v{vT+2}
            v_cmp_lt_u32 vcc, 191, v{vT}
            v_mov_b32 v{vT+4}, 0x7f000000
            s_nop 0
            v_cndmask_b32 v{vSt+ct}, v{vSt+ct}, v{vT+4}, vcc
            """)
        start()
        lp.emit("vv",True,barpos,hook1("vv"),xt_load(166))
        g.RT(2)
        a("s_waitcnt vmcnt(0)")
        g.local_flag(a,166)
        a("s_mov_b32 s57, s63\ns_nop 3\ns_cmp_lg_u32 s57, 0\ns_cbranch_scc1 L_p1_vloc")
        for fl in (st,""):
            for tt,ct in ((0,0),(0,1),(1,1),(1,0)):
                b=ACC[tt][ct]
                for j in range(8): a(f"v_cvt_pk_bf16_f32 v{b+j}, v{b+2*j}, v{b+2*j+1}")
                for s in range(2):
                    a(f"buffer_store_dwordx4 {vr(b+4*s,4)}, v{vSt+ct}, s[{sD}:{sD+3}], s{sGo} offen offset:{tt*1280+s*640}{fl}")
            if fl: a("s_branch L_p1_done\nL_p1_vloc:")
        a(f"L_p1_done:")
        g.pub1=(sFl,vN)

    def attn(g):
        a=g.a; name="p2"; o=g.o
        unroll=o.get("unroll",3); prio=o.get("prio",(84,84)); npro=4; ld=g.sc("ld2"); st=g.sc("st2")
        vLane=1; vKn=2; vVn=3; vFl=4; vIdx=5; vKb=6; vVb=7; vT=8
        Q1=[16,20]; Q2e=[24,26]; Q2o=[28,30]
        K1=[32,36,40,44]; K2=48
        V=[[52+8*t+4*s for s in range(2)] for t in range(4)]
        SB=[84+16*i for i in range(4)]
        O=[148,164]
        sKV=8; sQ=12; sO=16; sW=sWave; sG=21; sVM=22; sDma=39
        vmask=0
        for i in range(32):
            if isinstance(row_dim(i),int): vmask|=1<<i
        a(f"""
        s_and_b32 s26, s2, 7
        s_lshr_b32 s27, s2, 3
        s_lshr_b32 s28, s26, 2
        s_and_b32 s29, s26, 3
        s_lshl_b32 s29, s29, 3
        s_and_b32 s30, s27, 7
        s_add_u32 s29, s29, s30
        s_lshr_b32 s30, s27, 3
        s_lshl_b32 s31, s28, 5
        s_add_u32 s31, s31, s29
        """)
        a.c("s28=blk s29=head s30=qb s31=p")
        a(f"""
        s_mul_i32 s32, s31, {KV_IMG}
        s_mul_i32 s33, s31, {Q_IMG}
        s_add_u32 s33, s33, {Q_OFF}
        s_mul_i32 s34, s28, {O_BLK}
        s_add_u32 s34, s34, {O_OFF}
        s_mov_b32 s{sKV+2}, {KV_IMG}
        s_mov_b32 s{sKV+3}, 0x20000
        s_mov_b32 s{sQ+2}, {Q_IMG}
        s_mov_b32 s{sQ+3}, 0x20000
        s_mov_b32 s{sO+2}, {O_BLK}
        s_mov_b32 s{sO+3}, 0x20000
        s_add_u32 s{sKV}, s{sWS}, s32
        s_addc_u32 s{sKV+1}, s{sWS+1}, 0
        s_add_u32 s{sQ}, s{sWS}, s33
        s_addc_u32 s{sQ+1}, s{sWS+1}, 0
        s_add_u32 s{sO}, s{sWS}, s34
        s_addc_u32 s{sO+1}, s{sWS+1}, 0
        v_lshlrev_b32 v{vKb}, 4, v{vLane}
        s_lshl_b32 s35, s30, 2
        s_lshr_b32 s36, s{sW}, 1
        s_add_u32 s35, s35, s36
        s_mul_i32 s35, s35, 5120
        s_and_b32 s36, s{sW}, 1
        s_lshl_b32 s37, s36, 11
        s_add_u32 s37, s37, s35
        s_lshl_b32 s38, s36, 9
        s_add_u32 s38, s38, s35
        s_add_u32 s38, s38, 4096
        s_lshl_b32 s{sDma}, s{sW}, 10
        s_mov_b32 m0, s{sDma}
        """)
        a.c("per-lane V address: h*320 + slot(dim(row))*16 + 5120")
        a(f"""
        v_and_b32 v{vT}, 31, v{vLane}
        v_bfe_u32 v{vT+1}, v{vT}, 2, 1
        v_and_b32 v{vT+2}, 3, v{vT}
        v_lshrrev_b32 v{vT+3}, 3, v{vT}
        v_lshl_add_u32 v{vT+2}, v{vT+3}, 2, v{vT+2}
        v_mul_u32_u24 v{vT+1}, 10, v{vT+1}
        v_add_u32 v{vT+1}, v{vT+1}, v{vT+2}
        v_add_u32 v{vT+3}, 6, v{vT+1}
        v_cmp_gt_u32 vcc, 4, v{vT+1}
        s_mov_b32 s{sVM}, {vmask:#x}
        s_mov_b32 s{sVM+1}, {vmask:#x}
        v_cndmask_b32 v{vT+3}, v{vT+3}, v{vT+1}, vcc
        v_cmp_lt_u32 vcc, 13, v{vT+1}
        v_subrev_u32 v{vVb}, 10, v{vT+1}
        s_nop 0
        v_cndmask_b32 v{vT+3}, v{vT+3}, v{vVb}, vcc
        v_lshlrev_b32 v{vT+3}, 4, v{vT+3}
        v_lshrrev_b32 v{vVb}, 5, v{vLane}
        v_mul_u32_u24 v{vVb}, 320, v{vVb}
        v_add_u32 v{vVb}, v{vVb}, v{vT+3}
        v_add_u32 v{vVb}, 5120, v{vVb}
        v_cmp_eq_u32 vcc, 10, v{vT+2}
        v_mov_b32 v{vIdx}, 0xdddddddd
        v_mov_b32 v{vT+3}, 0x3f803f80
        v_cndmask_b32 v{vT+3}, 0, v{vT+3}, vcc
        v_lshlrev_b32 v{vT+1}, 4, v{vT}
        """)
        for t in range(4):
            for s in range(2):
                for j in range(4): a(f"v_mov_b32 v{V[t][s]+j}, v{vT+3}")
        for j in range(16): a(f"v_mov_b32 v{SB[3]+j}, 0")
        a.c("Wo staging: piece n = 64u + lane of a k step -> LDS row rho = n/10, 16-byte column n%10; source row in the k order of the O image")
        a(f"s_mul_i32 s35, s28, 24\ns_add_u32 s50, s0, s35\ns_addc_u32 s51, s1, 0\ns_load_dwordx2 s[52:53], s[50:51], 16")
        W0=182; Tm=192
        for u in range(5):
            a(f"""
            v_add_u32 v{Tm}, {64*u}, v{vLane}
            v_mul_u32_u24 v{Tm+1}, 6554, v{Tm}
            v_lshrrev_b32 v{Tm+1}, 16, v{Tm+1}
            v_mul_u32_u24 v{Tm+2}, 10, v{Tm+1}
            v_sub_u32 v{Tm}, v{Tm}, v{Tm+2}
            v_lshlrev_b32 v{Tm}, 4, v{Tm}
            v_lshrrev_b32 v{Tm+2}, 4, v{Tm+1}
            v_bfe_u32 v{Tm+3}, v{Tm+1}, 2, 1
            v_mul_u32_u24 v{Tm+3}, 10, v{Tm+3}
            v_bfe_u32 v{Tm+4}, v{Tm+1}, 3, 1
            v_and_b32 v{Tm+5}, 3, v{Tm+1}
            v_lshl_add_u32 v{Tm+6}, v{Tm+4}, 2, v{Tm+5}
            v_mad_u32_u24 v{Tm+5}, v{Tm+2}, 20, v{Tm+3}
            v_add_u32 v{Tm+5}, v{Tm+5}, v{Tm+6}
            v_mul_u32_u24 v{Tm+5}, 1280, v{Tm+5}
            v_add_u32 v{W0+u}, v{Tm+5}, v{Tm}
            v_mul_u32_u24 v{Tm+2}, 80, v{Tm+2}
            v_add_u32 v{Tm+2}, v{Tm+2}, v{Tm+3}
            v_mad_u32_u24 v{Tm+2}, v{Tm+4}, 40, v{Tm+2}
            v_bfe_u32 v{Tm+3}, v{Tm+1}, 1, 1
            v_mad_u32_u24 v{Tm+2}, v{Tm+3}, 20, v{Tm+2}
            v_and_b32 v{Tm+3}, 1, v{Tm+1}
            v_add3_u32 v{Tm+2}, v{Tm+2}, v{Tm+3}, 8
            v_mul_u32_u24 v{Tm+2}, 1280, v{Tm+2}
            v_add_u32 v{W0+5+u}, v{Tm+2}, v{Tm}
            """)
        a(f"""
        s_waitcnt lgkmcnt(0)
        v_mov_b32 v{vKn}, v{vKb}
        v_mov_b32 v{vVn}, v{vVb}
        """)
        a.c("publish: every wave's stores are done, then one lane writes the tag of this launch")
        a(f"""
        s_cmp_lg_u32 s{sW}, {g.o.get('pw1',7)}
        s_cbranch_scc1 L_p1_nq
        {"global_load_dwordx2 v[164:165], v162, s[88:89] sc1" if g.o.get("spec1",0) else ""}
        L_p1_nq:
        s_waitcnt vmcnt(0)
        """)
        g.RT(3)
        a("s_barrier")
        g.get_nonce(a,"a",g.pub1[1])
        a(f"s_cmp_lg_u32 s{sW}, 0\ns_cbranch_scc1 L_p1_ns")
        g.signal(a,g.pub1[0],"1",57)
        a("L_p1_ns:")
        a(f"s_cmp_lg_u32 s{sW}, {g.o.get('pw1',7)}\ns_cbranch_scc1 L_p2_np")
        g.poll(a,162,"1",164)
        a("L_p2_np:\ns_barrier")
        g.RT(4)
        def dma():
            return [f"buffer_load_dwordx4 v{vKb}, s[{sKV}:{sKV+3}], s{sDma} offen{ld} lds",
                    f"s_add_u32 s{sDma}, s{sDma}, 8192", f"s_mov_b32 m0, s{sDma}"]
        for l in dma(): a(l)
        a(f"""
        buffer_load_dwordx4 {vr(Q1[0],4)}, v{vKb}, s[{sQ}:{sQ+3}], s37 offen{g.sc("ldq")}
        buffer_load_dwordx4 {vr(12,4)}, v{vT+1}, s[{sQ}:{sQ+3}], s38 offen{g.sc("ldq")}
        """)
        op=0; late=o.get("late3",1)
        def rest():
            a(f"buffer_load_dwordx4 {vr(Q1[1],4)}, v{vKb}, s[{sQ}:{sQ+3}], s37 offen offset:1024{g.sc('ldq')}")
            for m in range(1,npro):
                for l in dma(): a(l)
                a("s_nop 0")
        if not late: rest()
        for q in range(2):
            for j in range(16): a(f"v_mov_b32 v{O[q]+j}, 0")
        a(f"v_cmp_gt_u32 vcc, 32, v{vLane}\ns_waitcnt vmcnt({0 if late else npro})\ns_barrier")
        a(f"ds_read_b128 {vr(K1[0],4)}, v{vKb}")
        a(f"ds_read_b128 {vr(K2,4)}, v{vKb} offset:4096")
        for t in range(1,4): a(f"ds_read_b128 {vr(K1[t],4)}, v{vKb} offset:{t*1024}")
        a(f"s_mov_b64 exec, s[{sVM}:{sVM+1}]")
        for t in range(3 if op else 2):
            for s in range(2): a(f"ds_read_b128 {vr(V[t][s],4)}, v{vVb} offset:{t*1280+s*640}")
        a(f"s_mov_b64 exec, -1\ns_mov_b32 s{sG}, 0")
        if late: rest()
        a.c("Q2 variants: e = extras in lanes 0-31 only, o = in lanes 32-63 only")
        for q in range(2):
            for j in range(2):
                a(f"v_cndmask_b32 v{Q2e[q]+j}, 0, v{12+2*q+j}, vcc")
                a(f"v_cndmask_b32_e64 v{Q2o[q]+j}, v{12+2*q+j}, 0, vcc")
        a(f"s_waitcnt lgkmcnt({9 if op else 7})")
        def qk1(n):
            kt=(n>>1)&3; qt=n&1
            return f"v_mfma_f32_32x32x16_bf16 {vr(SB[n%4],16)}, {vr(K1[kt],4)}, {vr(Q1[qt],4)}, 0"
        def qk2(n):
            kt=(n>>1)&3; qt=n&1
            q2=(Q2e if kt<2 else Q2o)[qt]
            return f"v_mfma_f32_32x32x8_bf16 {vr(SB[n%4],16)}, {vr(K2+2*(kt&1),2)}, {vr(q2,2)}, {vr(SB[n%4],16)}"
        def pv(n,s):
            kt=(n>>1)&3; qt=n&1
            return f"v_smfmac_f32_32x32x32_bf16 {vr(O[qt],16)}, {vr(V[kt][s],4)}, {vr(SB[n%4]+8*s,8)}, v{vIdx}"
        a(qk1(0)); a(qk2(0))
        a(f"s_waitcnt vmcnt({npro-1})\ns_nop 7\ns_nop 2")
        g.RT(5)
        def group_body(u, last, dmas, first=False, dmaf=None):
            body=[]; held=[]; dmaf=dmaf or dma
            def ex(n,j0):
                body.append(("q",4*n+j0//4))
                for j in range(j0,j0+4): body.append(("i",f"v_exp_f32 v{SB[n%4]+j}, v{SB[n%4]+j}"))
            nx=(u+1)*10240; cu=u*10240
            for n in range(8):
                m=n+1; kt=(m>>1)&3
                A=[];B=[];C=[]
                if m&1 and m<8: A.append(("read",f"K1{kt}",f"ds_read_b128 {vr(K1[kt],4)}, v{vKn} offset:{nx+kt*1024}",True))
                if m==5: B.append(("read","K20",f"ds_read_b64 {vr(K2,2)}, v{vKn} offset:{nx+4096}",True))
                if m==7: B.append(("read","K21",f"ds_read_b64 {vr(K2+2,2)}, v{vKn} offset:{nx+4096+8}",True))
                for k in range(dmas[n]):
                    for l in dmaf(): B.append(("i",l))
                    if k+1<dmas[n]: B.append(("i","s_nop 0"))
                pn=(n-1)%8; pk=pn>>1
                if pn&1 and not (last and pk!=3):
                    off=cu if pk==3 else nx
                    C.append(("i",f"s_mov_b64 exec, s[{sVM}:{sVM+1}]"))
                    for s in range(2): C.append(("read",f"V{pk}{s}",f"ds_read_b128 {vr(V[pk][s],4)}, v{vVn} offset:{off+pk*1280+s*640}",pk!=3))
                    C.append(("i","s_mov_b64 exec, -1"))
                if first and n<SYNC:
                    held+=[x for x in A if x[0]=="read"]; A=[]
                    if C and pk==3 and op: pass
                    elif C and pk==3:
                        held+=[C[0]]+[("read",f"V2{s_}",f"ds_read_b128 {vr(V[2][s_],4)}, v{vVn} offset:{2*1280+s_*640}",False) for s_ in range(2)]+C[1:]; C=[]
                    elif C: held+=C; C=[]
                if first and n==SYNC:
                    body.append(("i",f"s_waitcnt vmcnt({sum(dmas[:SYNC])})")); body.append(("i","s_barrier"))
                    body+=held
                body.append(("slot",n))
                if not (last and m==8):
                    body.append(("use",f"K1{kt}")); body.append(("i",qk1(m)))
                body+=A
                ex(n,0)
                if not (last and m==8):
                    body.append(("use",f"K2{kt&1}")); body.append(("i",qk2(m)))
                body+=B
                ex(n,4)
                body.append(("use",f"V{pk}0")); body.append(("i",pv(pn,0)))
                ex(n,8)
                body.append(("use",f"V{pk}1")); body.append(("i",pv(pn,1)))
                body+=C
                ex(n,12)
            return body
        SYNC=o.get('sync',4)
        gb=group_body(0,False,[0]*8)
        def need(nm,at):
            L=len(gb); cnt=0; i=at-1
            while True:
                b=gb[i%L]
                if b[0]=="read":
                    if b[1]==nm: return cnt
                    cnt+=1
                i-=1
        slotpos=[i for i,b in enumerate(gb) if b[0]=="slot"]+[len(gb)]
        waits={}
        for k in range(8):
            w=99
            for i in range(slotpos[k],slotpos[k+1]):
                if gb[i][0]=="use":
                    for j in range(slotpos[k],i): assert not (gb[j][0]=="read" and gb[j][1]==gb[i][1])
                    w=min(w,need(gb[i][1],slotpos[k]))
            waits[k]=w
        def exact_waits(seq, queue):
            q=list(queue); res={}; pos=[i for i,b in enumerate(seq) if b[0]=="slot"]+[len(seq)]
            for i,b in enumerate(seq):
                if b[0]=="read": q.append(b[1])
                if b[0]=="slot":
                    nxt=min(p for p in pos if p>i); w=99
                    for j in range(i,nxt):
                        if seq[j][0]=="use":
                            for jj in range(i,j): assert not (seq[jj][0]=="read" and seq[jj][1]==seq[j][1])
                            if seq[j][1] in q:
                                last_i=len(q)-1-q[::-1].index(seq[j][1]); w=min(w,len(q)-1-last_i)
                    if w<99:
                        assert w<=15
                        res[i]=w; q=q[len(q)-w:] if w else []
            return res
        def emit(body,last=False,qbase=0,pr=None,ew=None):
            if last: body=[b for b in body if not (b[0]=="read" and b[3])]
            for i,b in enumerate(body):
                if b[0]=="slot":
                    w=waits[b[1]] if ew is None else ew.get(i)
                    if last: w={0:waits[0],1:0,7:0}.get(b[1])
                    if w is not None: a(f"s_waitcnt lgkmcnt({w})")
                elif b[0]=="q":
                    if pr is not None:
                        q=qbase+b[1]
                        if q%32==0 and (q==0 or ew is not None): a("s_setprio 1")
                        if q==pr: a("s_setprio 0")
                elif b[0]=="i": a(b[1])
                elif b[0]=="read": a(b[2])
        d=[2]*8
        pr=prio[0]; p1=max(pr-32*(unroll-1),1)
        seq=group_body(0,False,d,first=True)+group_body(1,False,[0]*8)
        emit(seq,pr=p1,ew=exact_waits(seq,["K11","K12","K13","V00","V01","V10","V11"]+(["V20","V21"] if op else [])))
        a(f"""
        v_add_u32 v{vKn}, {2*10240}, v{vKn}
        v_add_u32 v{vVn}, {2*10240}, v{vVn}
        s_waitcnt vmcnt(0)
        s_barrier
        """)
        nloop=13//unroll; tail=13-nloop*unroll
        a(".p2align 5")
        a(f"L_p2_loop:")
        for u in range(unroll): emit(group_body(u,False,[0]*8),qbase=32*u,pr=pr)
        a(f"""
        s_add_u32 s{sG}, s{sG}, 1
        v_add_u32 v{vKn}, {unroll*10240}, v{vKn}
        v_add_u32 v{vVn}, {unroll*10240}, v{vVn}
        s_cmp_lg_u32 s{sG}, {nloop}
        s_cbranch_scc1 L_p2_loop
        """)
        assert tail==1
        a.c("key groups 0..13 are consumed by every wave: stage the Wo rows of the projection tile over groups 0..11")
        a(f"""
        s_lshr_b32 s40, s2, 3
        s_and_b32 s40, s40, 7
        s_mul_i32 s40, s40, 160
        s_mov_b32 s{sQ}, s52
        s_mov_b32 s{sQ+1}, s53
        s_mov_b32 s{sQ+2}, {640*1280}
        s_mul_i32 s46, s{sW}, {40*1280}
        s_add_u32 s46, s46, s40
        s_add_u32 s47, s46, {320*1280}
        s_mul_i32 s48, s{sW}, {160*1280}
        s_add_u32 s48, s48, s40
        s_mul_i32 s{sDma}, s{sW}, 5120
        s_mov_b32 m0, s{sDma}
        s_barrier
        """)
        cnt=[0]
        def dmaw():
            r,u=divmod(cnt[0],5); cnt[0]+=1
            r2_,u2=divmod(cnt[0],5)
            return [f"buffer_load_dwordx4 v{W0+5*(r==2)+u}, s[{sQ}:{sQ+3}], s{46+r} offen lds",
                    f"s_add_u32 m0, s{sDma}, {r2_*40960+u2*1024}"]
        emit(group_body(0,False,[2,2,2,2,2,2,2,1],dmaf=dmaw),pr=p1)
        emit(group_body(tail,True,[0]*8),last=True,pr=p1)
        a(pv(7,0)); a(pv(7,1))
        g.RT(6)
        a.c("O image: [blk][q tile][40 fragments of 1 KiB]: fragment head = dims 10h..10h+7, fragment 32+(head>>2) dword head&3 = dims 10h+8,9")
        a(f"""
        s_setprio 0
        s_lshl_b32 s35, s30, 4
        s_lshl_b32 s36, s{sW}, 1
        s_add_u32 s35, s35, s36
        s_mul_i32 s35, s35, 40960
        s_lshr_b32 s36, s29, 2
        s_lshl_b32 s36, s36, 10
        s_and_b32 s37, s29, 3
        s_lshl_b32 s37, s37, 2
        s_add_u32 s36, s36, s37
        s_add_u32 s36, s36, 32768
        s_add_u32 s33, s35, s36
        s_lshl_b32 s36, s29, 10
        s_add_u32 s35, s35, s36
        """)
        a.c("safety check of the unshifted softmax: 2^-16 <= l <= 2^60 and finite accumulators, else redo with the true max")
        a(f"""
        s_mov_b32 s36, 0x37800000
        s_mov_b32 s37, 0x5d800000
        s_mov_b32 s38, 0x7f800000
        s_mov_b64 s[46:47], -1
        """)
        for q in range(2):
            a(f"v_cmp_le_f32 vcc, s36, v{O[q]+10}\ns_and_b64 s[46:47], s[46:47], vcc")
            a(f"v_cmp_ge_f32 vcc, s37, v{O[q]+10}\ns_and_b64 s[46:47], s[46:47], vcc")
            a(f"v_add_f32_e64 v{vT+2}, abs(v{O[q]}), abs(v{O[q]+1})")
            for j in range(2,10): a(f"v_add_f32_e64 v{vT+2}, v{vT+2}, abs(v{O[q]+j})")
            a(f"v_cmp_gt_f32 vcc, s38, v{vT+2}\ns_and_b64 s[46:47], s[46:47], vcc")
        a(f"""
        s_cmp_eq_u64 s[46:47], -1
        s_cbranch_scc0 L_p2_slow
        L_p2_fin:
        """)
        for q in range(2):
            a(f"v_rcp_f32 v{vT+2}, v{O[q]+10}\ns_nop 0")
            for j in range(10): a(f"v_mul_f32 v{O[q]+j}, v{O[q]+j}, v{vT+2}")
            for j in range(5): a(f"v_cvt_pk_bf16_f32 v{O[q]+j}, v{O[q]+2*j}, v{O[q]+2*j+1}")
        a("s_add_u32 s36, s35, 40960\ns_add_u32 s37, s33, 40960\ns_mov_b32 s63, 0")
        for q in range(2):
            a(f"buffer_store_dwordx4 {vr(O[q],4)}, v{vKb}, s[{sO}:{sO+3}], s{35+q} offen{st}")
            a(f"buffer_store_dword v{O[q]+4}, v{vKb}, s[{sO}:{sO+3}], s{33+4*q} offen{st}")
        a.c("flag of this tile: F2 + (blk*4+qb)*256 + head*8")
        a(f"""
        s_lshl_b32 s40, s28, 2
        s_add_u32 s40, s40, s30
        s_lshl_b32 s40, s40, 8
        s_lshl_b32 s41, s29, 3
        s_add_u32 s40, s40, s41
        s_add_u32 s40, s40, {F2_OFF}
        s_and_b32 s41, s2, 7
        s_lshl_b32 s41, s41, 8
        s_add_u32 s41, s41, {F2_OFF}
        v_and_b32 v22, 31, v{vLane}
        v_lshl_add_u32 v22, v22, 3, s41
        s_cmp_lg_u32 s{sW}, {g.o.get('pw2',7)}
        s_cbranch_scc1 L_p2_nq
        {"global_load_dwordx2 v[24:25], v22, s[88:89] sc1" if g.o.get("spec2",0) else ""}
        L_p2_nq:
        s_waitcnt vmcnt(0)
        """)
        g.RT(7)
        a("s_barrier")
        t=g.tail; M=[SB[2],SB[3]]
        t(f"L_p2_slow:")
        t(f"v_mov_b32 v{vT+4}, 0xff800000\nv_mov_b32 v{vT+5}, 0xff800000")
        for ps in range(2):
            t(f"""
            v_mov_b32 v{vKn}, v{vKb}
            v_mov_b32 v{vVn}, v{vVb}
            s_mov_b32 s{sG}, 0
            L_p2_slow{ps}:
            """)
            for tt in range(4): t(f"buffer_load_dwordx4 {vr(K1[tt],4)}, v{vKn}, s[{sKV}:{sKV+3}], 0 offen offset:{tt*1024}{ld}")
            t(f"s_movk_i32 s40, 0x1000\nbuffer_load_dwordx4 {vr(K2,4)}, v{vKn}, s[{sKV}:{sKV+3}], s40 offen{ld}")
            if ps==1:
                t(f"s_mov_b64 exec, s[{sVM}:{sVM+1}]")
                for tt in range(4):
                    for s in range(2):
                        off=tt*1280+s*640
                        t(f"buffer_load_dwordx4 {vr(V[tt][s],4)}, v{vVn}, s[{sKV}:{sKV+3}], {'0' if off<4096 else 's40'} offen offset:{off%4096}{ld}")
                t("s_mov_b64 exec, -1")
            t("s_waitcnt vmcnt(0)")
            for n in range(8):
                kt=n>>1; qt=n&1; sb=SB[0]
                q2=(Q2e if kt<2 else Q2o)[qt]
                c="0" if ps==0 else vr(M[qt],16)
                t(f"v_mfma_f32_32x32x16_bf16 {vr(sb,16)}, {vr(K1[kt],4)}, {vr(Q1[qt],4)}, {c}")
                t(f"v_mfma_f32_32x32x8_bf16 {vr(sb,16)}, {vr(K2+2*(kt&1),2)}, {vr(q2,2)}, {vr(sb,16)}")
                t("s_nop 15")
                if ps==0:
                    for j in range(0,16,2): t(f"v_max3_f32 v{vT+4+qt}, v{vT+4+qt}, v{sb+j}, v{sb+j+1}")
                else:
                    for j in range(16): t(f"v_exp_f32 v{sb+j}, v{sb+j}")
                    t("s_nop 1")
                    for s in range(2): t(f"v_smfmac_f32_32x32x32_bf16 {vr(O[qt],16)}, {vr(V[kt][s],4)}, {vr(sb+8*s,8)}, v{vIdx}")
            t(f"""
            v_add_u32 v{vKn}, 10240, v{vKn}
            v_add_u32 v{vVn}, 10240, v{vVn}
            s_add_u32 s{sG}, s{sG}, 1
            s_cmp_lg_u32 s{sG}, 16
            s_cbranch_scc1 L_p2_slow{ps}
            """)
            if ps==0:
                t.c("combine the two half-waves (same query, other 16 keys), negate, broadcast; clear O")
                for q in range(2):
                    t(f"""
                    v_mov_b32 v{vT+6}, v{vT+4+q}
                    v_mov_b32 v{vT+7}, v{vT+4+q}
                    s_nop 1
                    v_permlane32_swap_b32 v{vT+6}, v{vT+7}
                    s_nop 1
                    v_max_f32 v{vT+6}, v{vT+6}, v{vT+7}
                    v_sub_f32 v{vT+6}, 0, v{vT+6}
                    """)
                    for j in range(16): t(f"v_mov_b32 v{M[q]+j}, v{vT+6}")
                    for j in range(16): t(f"v_mov_b32 v{O[q]+j}, 0")
        t(f"s_nop 15\ns_branch L_p2_fin")

    def proj(g):
        a=g.a; ld=g.sc("ld3")
        vLane=1; vXd=2; vWa=3; vSt=4; vRd=6; vT=8
        WF=[[28+4*c for c in range(5)],[48+4*c for c in range(5)]]
        ACC=[68+4*c for c in range(5)]
        X=[88+4*f for f in range(20)]
        sX=8; sD=16; sW=sWave; sBlk=28; sTb=29; sCb=30; sXo=25; sWo=26
        a(f"""
        s_cmp_lg_u32 s{sW}, 0
        s_cbranch_scc1 L_p3_go
        """)
        g.signal(a,40,"2",63)
        a(f"""
        L_p3_go:
        s_load_dwordx2 s[38:39], s[0:1], 48
        s_and_b32 s34, s2, 7
        s_lshr_b32 s33, s2, 3
        s_lshr_b32 s{sBlk}, s34, 2
        s_and_b32 s34, s34, 3
        s_and_b32 s{sCb}, s33, 7
        s_lshr_b32 s35, s33, 3
        s_lshl_b32 s{sTb}, s34, 2
        s_add_u32 s{sTb}, s{sTb}, s35
        s_lshr_b32 s20, s{sW}, 1
        s_and_b32 s21, s{sW}, 1
        s_lshl_b32 s{sXo}, s{sTb}, 2
        s_add_u32 s{sXo}, s{sXo}, s20
        s_mul_i32 s{sXo}, s{sXo}, 40960
        s_lshl_b32 s35, s21, 8
        s_add_u32 s{sXo}, s{sXo}, s35
        s_mul_i32 s{sWo}, s{sCb}, 160
        s_mov_b32 s{sX+2}, {O_BLK}
        s_mov_b32 s{sX+3}, 0x20000
        s_mul_i32 s35, s{sBlk}, {O_BLK}
        s_add_u32 s35, s35, {O_OFF}
        s_add_u32 s{sX}, s{sWS}, s35
        s_addc_u32 s{sX+1}, s{sWS+1}, 0
        s_cmp_ge_u32 s{sCb}, 5
        s_cselect_b32 s35, 5, 0
        s_sub_u32 s42, s{sCb}, s35
        """)
        if not g.o.get("rot3",True): a("s_mov_b32 s42, 0")
        a.c("transposing read address: (16(g>>1) + 4(g&1) + r)*160 + c4*8 + k half*10240")
        a(f"""
        v_lshrrev_b32 v{vT}, 4, v{vLane}
        v_lshrrev_b32 v{vT+2}, 1, v{vT}
        v_lshlrev_b32 v{vT+2}, 4, v{vT+2}
        v_and_b32 v{vT+3}, 1, v{vT}
        v_lshl_add_u32 v{vT+2}, v{vT+3}, 2, v{vT+2}
        v_bfe_u32 v{vT+3}, v{vLane}, 2, 2
        v_add_u32 v{vT+2}, v{vT+2}, v{vT+3}
        v_mul_u32_u24 v{vT+2}, 160, v{vT+2}
        v_and_b32 v{vT+3}, 3, v{vLane}
        v_lshl_add_u32 v{vWa}, v{vT+3}, 3, v{vT+2}
        """)
        a.c("round R handles k steps 4r..4r+3, r = (R + column block) mod 5: s[44+R] = X offset, v[16+R] = W address")
        for R in range(5):
            a(f"""
            s_lshl_b32 s{44+R}, s42, 13
            s_add_u32 s{44+R}, s{44+R}, s{sXo}
            s_add_u32 s{50+R}, s{44+R}, 4096
            s_mul_i32 s35, s42, 20480
            v_add_u32 v{16+R}, s35, v{vWa}
            s_add_u32 s42, s42, 1
            s_cmp_eq_u32 s42, 5
            s_cselect_b32 s42, 0, s42
            """)
        a(f"""
        v_and_b32 v{vT+1}, 15, v{vLane}
        v_lshlrev_b32 v{vXd}, 9, v{vT}
        v_lshl_add_u32 v{vXd}, v{vT+1}, 4, v{vXd}
        v_and_b32 v{vT+2}, 3, v{vLane}
        v_bfe_u32 v{vT+3}, v{vLane}, 2, 1
        v_lshl_or_b32 v{vT+2}, v{vT+3}, 3, v{vT+2}
        v_bfe_u32 v{vT+3}, v{vLane}, 3, 1
        v_lshl_or_b32 v{vT+2}, v{vT+3}, 2, v{vT+2}
        v_mul_u32_u24 v{vT+2}, 2560, v{vT+2}
        v_lshl_add_u32 v{vSt+1}, v{vT}, 3, v{vT+2}
        v_and_b32 v{vT+3}, 1, v{vT}
        v_lshl_add_u32 v{vT+2}, v{vT+3}, 5, v{vT+2}
        v_lshrrev_b32 v{vT+3}, 1, v{vT}
        v_lshl_add_u32 v{vSt}, v{vT+3}, 4, v{vT+2}
        s_mov_b32 s{sD+2}, {2048*2560}
        s_mov_b32 s{sD+3}, 0x20000
        s_lshl_b32 s40, s{sTb}, 7
        s_lshl_b32 s41, s20, 5
        s_add_u32 s40, s40, s41
        s_lshl_b32 s41, s21, 4
        s_add_u32 s40, s40, s41
        s_mul_i32 s40, s40, 2560
        s_mul_i32 s41, s{sBlk}, 1280
        s_add_u32 s40, s40, s41
        s_add_u32 s40, s40, s{sWo}
        s_waitcnt lgkmcnt(0)
        s_mov_b32 s{sD}, s38
        s_mov_b32 s{sD+1}, s39
        """)
        def wreads(f,buf):
            return ["\n".join(f"ds_read_b64_tr_b16 {vr(WF[buf][c]+2*sec,2)}, v{16+f//4} offset:{(f%4)*5120+sec*1280+c*32}" for sec in range(2)) for c in range(5)]
        for x in wreads(0,0): a(x)
        a(f"s_cmp_lg_u32 s{sW}, {g.o.get('pw2',7)}\ns_cbranch_scc1 L_p3_np")
        g.poll(a,22,"2",24)
        a("L_p3_np:\ns_barrier")
        g.RT(8)
        UP=g.o.get("up3",8)
        def xload(f): return f"buffer_load_dwordx4 {vr(X[f],4)}, v{vXd}, s[{sX}:{sX+3}], s{(44 if (f&3)<2 else 50)+f//4} offen offset:{(f&1)*2048}{ld}"
        for f in range(UP): a(xload(f))
        issued=UP
        for f in range(20):
            buf=f&1
            rd=wreads(f+1,buf^1) if f<19 else []
            a(f"s_waitcnt vmcnt({issued-f-1})")
            if g.stamp and g.o.get("st3")==f: a("s_memrealtime s[96:97]\ns_waitcnt lgkmcnt(0)\nv_mov_b32 v241, s96")
            for c in range(5):
                if c in (0,3): a(f"s_waitcnt lgkmcnt({(4 if c==0 else 6) if rd else (4 if c==0 else 0)})")
                d=vr(ACC[c],4)
                a(f"v_mfma_f32_16x16x32_bf16 {d}, {vr(WF[buf][c],4)}, {vr(X[f],4)}, {'0' if f==0 else d}")
                if rd: a(rd[c])
                if c in (1,3) and issued<20:
                    a(xload(issued)); issued+=1
        g.RT(9)
        a("s_nop 7")
        for p in range(2):
            A0=ACC[2*p]; A1=ACC[2*p+1]
            a(f"v_cvt_pk_bf16_f32 v{A0}, v{A0}, v{A0+1}\nv_cvt_pk_bf16_f32 v{A0+1}, v{A0+2}, v{A0+3}")
            a(f"v_cvt_pk_bf16_f32 v{A0+2}, v{A1}, v{A1+1}\nv_cvt_pk_bf16_f32 v{A0+3}, v{A1+2}, v{A1+3}")
            a("s_nop 1")
            a(f"v_permlane16_swap_b32 v{A0}, v{A0+2}\nv_permlane16_swap_b32 v{A0+1}, v{A0+3}")
            a(f"buffer_store_dwordx4 {vr(A0,4)}, v{vSt}, s[{sD}:{sD+3}], s40 offen offset:{p*64}")
        A4=ACC[4]
        a(f"v_cvt_pk_bf16_f32 v{A4}, v{A4}, v{A4+1}\nv_cvt_pk_bf16_f32 v{A4+1}, v{A4+2}, v{A4+3}")
        a(f"buffer_store_dwordx2 {vr(A4,2)}, v{vSt+1}, s[{sD}:{sD+3}], s40 offen offset:128")

    def build(g):
        a=g.a
        kernel_header(a,NAME)
        g.qkv(); g.attn(); g.proj()
        if g.stamp:
            a("s_waitcnt vmcnt(0)")
            g.RT(10)
        a("L_fin:")
        if g.stamp:
            a(f"""
            s_lshl_b32 s52, s2, 3
            s_add_u32 s52, s52, s{sWave}
            s_lshl_b32 s52, s52, 6
            s_add_u32 s52, s52, {64<<20}
            v_mov_b32 v16, s52
            s_mov_b64 exec, 1
            global_store_dwordx4 v16, v[240:243], s[{sWS}:{sWS+1}]
            global_store_dwordx4 v16, v[244:247], s[{sWS}:{sWS+1}] offset:16
            global_store_dwordx4 v16, v[248:251], s[{sWS}:{sWS+1}] offset:32
            """)
        a("L_end:\ns_endpgm")
        t=g.tail
        t(".p2align 5\nL_tab:")
        for hf,(c,row) in enumerate(tables2.table()):
            for runs,dest,sec in row: t(".byte "+", ".join(str(x) for x in [r+16*(hf&1) for r in runs]+dest))
        for tab in ((16,0,0),(4,256,1216),(8,1472,2432),(12,2688,2624)): t(".long %d, %d, %d, 0"%tab)
        t(".p2align 2")
        return a.text()+t.text(), kernel_desc(NAME, 256 if g.stamp else 200, 100)

def write(path, stamp=False, **opt):
    HEAD=open("concat_heads__mha_block__mha_block__prompt.s.ref").read().split("; Override launch")[0]
    t,d=Gen(stamp,opt).build()
    if opt.get("align") is not None:
        import align
        t,nw,nn=align.align8(t,"L_p2_np","L_p2_fin",opt["align"])
        print(path,"widened",nw,"nops",nn)
    s=HEAD+"; @launch grid=(256,1,1) block=(512,1,1) lds=163840\n"+'.amdgcn_target "amdgcn-amd-amdhsa--gfx950"\n.text\n'+t+d
    open(path,"w").write(s)

if __name__=="__main__":
    write("k4.s",sleep=1); write("k4_st.s",stamp=True,sleep=1)
```

```python
import random
def head_runs(h):
    a=h&7
    if a==1: return dict(p0=(0,1),p1=(3,4),ex=2)
    if a==3: return dict(p0=(1,2),p1=(3,4),ex=0)
    return dict(p0=(0,1),p1=(2,3),ex=4)
HALVES=[[(0,0,16)],[(0,16,16)],[(0,32,8),(1,0,8)],[(1,8,16)],[(1,24,16)]]
def items(sec,lo,n,shift):
    pieces=[];extras=[]
    for h in range(8):
        hr=head_runs(h)
        for part,key in ((0,'p0'),(1,'p1')):
            r0,r1=[5*h+r for r in hr[key]]
            if lo<=r0<lo+n:
                assert lo<=r1<lo+n
                pieces.append((h,part,r0-lo+shift,r1-lo+shift))
            else: assert not (lo<=r1<lo+n)
        e=5*h+hr['ex']
        if lo<=e<lo+n: extras.append((h,e-lo+shift))
    assert 2*len(pieces)+len(extras)==n and len(extras)%2==0
    return pieces,extras
def conflicts(runs):
    return len(runs)-len(set(r%8 for r in runs))
def assign(pieces,extras,nt,seed=0):
    rng=random.Random(seed); best=None
    for it in range(100000):
        ex=extras[:]; rng.shuffle(ex)
        slots=[('p',)+p for p in pieces]+[('e',ex[2*i][0],ex[2*i+1][0],ex[2*i][1],ex[2*i+1][1]) for i in range(len(ex)//2)]
        rng.shuffle(slots)
        c=sum(conflicts([r for s in slots[4*t:4*t+4] for r in s[3:5]]) for t in range(nt))
        if best is None or c<best[0]:
            best=(c,slots)
            if c==0: break
    return best
def table():
    rows=[]
    for hf in range(5):
        slots=[];secs=[];shift=0;conf=0
        for sec,lo,n in HALVES[hf]:
            p,e=items(sec,lo,n,shift); c,sl=assign(p,e,n//8); conf+=c
            slots+=sl; secs+=[sec]*(n//8); shift+=n
        row=[]
        for T in range(2):
            runs=[0]*8; dest=[0]*8
            for qp in range(2):
                for h in range(2):
                    s=slots[4*T+2*qp+h]
                    for k in range(2):
                        rho=2*qp+k
                        runs[4*(rho>>1)+2*(rho&1)+h]=s[3+k]
                    if s[0]=='p': dest[4*qp+2*h]=s[1]|(s[2]<<6); dest[4*qp+2*h+1]=s[1]
                    else: dest[4*qp+2*h]=s[1]|32; dest[4*qp+2*h+1]=s[2]
            row.append((runs,dest,secs[T]))
        rows.append((conf,row))
    for hf in range(5,8): rows.append((0,[([8*T+e for e in range(8)],[0]*8,2) for T in range(2)]))
    return rows
if __name__=="__main__":
    for r in table(): print(r)
```

```python
from asmlib import *
import k4
def gen_spin(j, K):
    a=Asm(); kernel_header(a,"spin_kernel")
    a(f"""
    s_cmp_ge_u32 s2, 1
    s_cbranch_scc1 L_spin_end
    s_load_dwordx2 s[4:5], s[0:1], 64
    s_waitcnt lgkmcnt(0)
    s_add_u32 s6, s4, {64<<20}
    s_addc_u32 s7, s5, 0
    v_lshlrev_b32 v1, 6, v0
    v_mov_b32 v2, -1
    v_mov_b32 v3, 0
    s_mov_b32 s8, 0
    L_spin_l:
    global_load_dword v4, v1, s[6:7]
    global_load_dword v5, v1, s[6:7] offset:{4*(j or 0)}
    s_waitcnt vmcnt(0)
    v_min_u32 v2, v2, v4
    v_max_u32 v3, v3, v5
    v_add_u32 v1, 4096, v1
    s_add_u32 s8, s8, 64
    s_cmp_lt_u32 s8, 2048
    s_cbranch_scc1 L_spin_l
    s_mov_b32 s20, -1
    s_mov_b32 s21, 0
    s_mov_b32 s8, 0
    L_spin_r:
    s_nop 4
    v_readlane_b32 s9, v2, s8
    v_readlane_b32 s10, v3, s8
    s_nop 4
    s_min_u32 s20, s20, s9
    s_max_u32 s21, s21, s10
    s_add_u32 s8, s8, 1
    s_cmp_lt_u32 s8, 64
    s_cbranch_scc1 L_spin_r
    """)
    if j is None: a("s_mov_b32 s12, 0")
    else: a(f"s_sub_u32 s12, s21, s20\ns_mul_i32 s12, s12, {K}\ns_min_u32 s12, s12, 20000")
    a("""
    s_memrealtime s[14:15]
    s_waitcnt lgkmcnt(0)
    L_spin_w:
    s_memrealtime s[16:17]
    s_waitcnt lgkmcnt(0)
    s_sub_u32 s18, s16, s14
    s_cmp_lt_u32 s18, s12
    s_cbranch_scc1 L_spin_w
    L_spin_end:
    s_endpgm
    """)
    return a.text(), kernel_desc("spin_kernel",8,32)
def write(path,j,K,**opt):
    HEAD=open("concat_heads__mha_block__mha_block__prompt.s.ref").read().split("; Override launch")[0]
    t,d=k4.Gen(True,opt).build(); ts,ds=gen_spin(j,K)
    s=HEAD+f"; @launch kernel={k4.NAME} grid=(256,1,1) block=(512,1,1) lds=163840\n; @launch kernel=spin_kernel grid=(1,1,1) block=(64,1,1) lds=0\n"
    s+='.amdgcn_target "amdgcn-amd-amdhsa--gfx950"\n.text\n'+t+d+ts+ds
    open(path,"w").write(s)
if __name__=="__main__":
    B=dict(sleep=1,up3=20,rot3=False,rot=(1,0,5))
    L=[None,1,2,5,6,10]
    for j in L: write(f"sp_{j}.s",j,2,**B)
    print(", ".join(f'"var/sp_{j}.s"' for j in L))
```

```python
from asmlib import *
import tables, struct

def f32bits(x): return struct.unpack("<I",struct.pack("<f",x))[0]

def stamp_store(a, nw_shift, sW, off=64<<20):
    a(f"""
    s_waitcnt vmcnt(0)
    s_memtime s[78:79]
    s_memrealtime s[82:83]
    s_load_dwordx2 s[50:51], s[0:1], 64
    s_waitcnt lgkmcnt(0)
    s_lshl_b32 s52, s2, {nw_shift}
    s_add_u32 s52, s52, s{sW}
    s_lshl_b32 s52, s52, 6
    s_add_u32 s52, s52, {off}
    s_add_u32 s50, s50, s52
    s_addc_u32 s51, s51, 0
    """)
    for i in range(1,8): a(f"s_sub_u32 s{64+2*i}, s{64+2*i}, s64\nv_mov_b32 v{7+i}, s{64+2*i}")
    a("""
    v_mov_b32 v15, s64
    v_mov_b32 v16, 0
    s_mov_b64 exec, 1
    global_store_dwordx4 v16, v[8:11], s[50:51]
    global_store_dwordx4 v16, v[12:15], s[50:51] offset:16
    v_mov_b32 v18, s80
    v_mov_b32 v19, s82
    global_store_dwordx2 v16, v[18:19], s[50:51] offset:32
    """)

class Loop:
    def __init__(s,a,name,NS,STG,ACC,XF,WF,vXa,vWa,xoffs,ndma,dma_fn,sC,sStg,early=False):
        s.__dict__.update(locals())
    def reads(s,buf,ks):
        r=[]
        for tt in range(2): r.append(f"ds_read_b128 {vr(s.XF[buf][tt],4)}, v{s.vXa[ks%len(s.vXa)]} offset:{s.xoffs(tt,ks)}")
        for ct in range(2):
            for sec in range(2): r.append(f"ds_read_b64_tr_b16 {vr(s.WF[buf][ct]+2*sec,2)}, v{s.vWa[ct]} offset:{ks*4096+sec*1024}")
        return [r[0],r[2],r[3],r[4],r[5],r[1]]
    def mfmas(s,buf,swap):
        m=[]
        for tt,ct in ((0,0),(0,1),(1,1),(1,0)):
            A,B=(s.XF[buf][tt],s.WF[buf][ct]) if swap else (s.WF[buf][ct],s.XF[buf][tt])
            d=vr(s.ACC[tt][ct],16)
            m.append(f"v_mfma_f32_32x32x16_bf16 {d}, {vr(A,4)}, {vr(B,4)}, {d}")
        return m
    def prologue_reads(s):
        for ks in range(2):
            for x in s.reads(ks,ks): s.a(x)
    def chunk(s,swap,dma,vm,last=False,barpos=1,hook=None):
        a=s.a
        G=s.dma_fn(groups=True) if dma else None
        slots={0:[],1:[],3:[]}
        if dma:
            loads=G[1:]
            slots[0]=[G[0]+loads[0],loads[1],loads[2]]; slots[1]=[loads[3],loads[4],loads[5]]
        for ks in range(4):
            m=s.mfmas(ks,swap)
            if ks==2:
                a("s_waitcnt lgkmcnt(0)")
                for i in range(barpos): a(m[i])
                if not last:
                    a(f"""
                    s_mov_b32 s{s.sStg+3}, s{s.sStg}
                    s_add_u32 s{s.sStg}, s{s.sStg}, {s.STG}
                    s_cmp_eq_u32 s{s.sStg}, {s.STG*s.NS}
                    s_cselect_b32 s{s.sStg}, 0, s{s.sStg}
                    s_sub_u32 s{s.sStg+2}, s{s.sStg}, s{s.sStg+3}
                    """)
                    for v in s.vXa+s.vWa: a(f"v_add_u32 v{v}, s{s.sStg+2}, v{v}")
                    a(f"s_waitcnt vmcnt({vm})\ns_barrier")
                    r=s.reads(0,0)
                    if hook: r=r+[hook]
                else: r=[]
                rest=m[barpos:]
                for i,x in enumerate(rest):
                    k0=i*len(r)//len(rest); k1=(i+1)*len(r)//len(rest)
                    for y in r[k0:k1]: a(y)
                    a(x)
                continue
            if ks<2: a("s_waitcnt lgkmcnt(6)")
            r=s.reads((ks+2)&3,(ks+2)&3) if not (last and ks==3) else []
            d=slots[ks]
            a(m[0])
            for y in r[0:2]: a(y)
            if d:
                for l in d[0]: a(l)
            a(m[1])
            for y in r[2:4]: a(y)
            if d:
                for l in d[1]: a(l)
            a(m[2])
            for y in r[4:6]: a(y)
            if d:
                for l in d[2]: a(l)
            if ks==3 and dma: a(f"s_add_u32 s{s.sC}, s{s.sC}, 1\ns_cmp_lg_u32 s{s.sC}, 8")
            a(m[3])
    def last_split(s,swap,mid):
        a=s.a
        M=lambda ks,ct:[m for m,(tt,c) in zip(s.mfmas(ks,swap),((0,0),(0,1),(1,1),(1,0))) if c==ct]
        r2=s.reads(2,2); r3=s.reads(3,3)
        a("s_waitcnt lgkmcnt(6)")
        m=M(0,0); a(m[0]); [a(y) for y in r2[:3]]; a(m[1]); [a(y) for y in r2[3:]]
        a("s_waitcnt lgkmcnt(6)")
        m=M(1,0); a(m[0]); [a(y) for y in r3[:3]]; a(m[1]); [a(y) for y in r3[3:]]
        m=M(0,1); a(m[0]); a(m[1])
        a("s_waitcnt lgkmcnt(6)")
        for x in M(2,0): a(x)
        a("s_waitcnt lgkmcnt(0)")
        for x in M(3,0): a(x)
        rest=M(1,1)+M(2,1)+M(3,1)
        a(rest[0]); a(rest[1])
        L=mid()
        n=(len(L)+3)//4
        for i,x in enumerate(rest[2:]):
            for y in L[i*n:(i+1)*n]: a(y)
            a(x)
    def emit(s,tag,swap,barpos=1,hook1=None,hook2=None,fill=None,mid=None):
        a=s.a; L=f"L_{s.name}_{tag}"
        a(".p2align 5"); a(f"{L}:")
        s.chunk(swap,True,s.ndma,barpos=barpos,hook=hook1)
        a(f"s_cbranch_scc1 {L}")
        if fill is None:
            s.chunk(swap,False,0,barpos=barpos,hook=hook2)
        else:
            sub=Asm(); s.a=sub; s.chunk(swap,False,0,barpos=barpos,hook=hook2); s.a=a
            fill=list(fill); n=(len(fill)+15)//16
            for l in sub.lines:
                a.lines.append(l)
                if "v_mfma" in l:
                    for y in fill[:n]: a.lines.append(y)
                    fill=fill[n:]
            assert not fill
        if mid is None: s.chunk(swap,False,0,last=True,barpos=barpos)
        else: s.last_split(swap,mid)

def w_frag_addr(a, vWa, vLane, vT, sRun, wbase):
    a(f"""
    v_lshrrev_b32 v{vT}, 4, v{vLane}
    v_and_b32 v{vT+1}, 1, v{vT}
    v_and_b32 v{vT+2}, 3, v{vLane}
    v_lshl_add_u32 v{vT+1}, v{vT+1}, 2, v{vT+2}
    v_lshlrev_b32 v{vT+1}, 3, v{vT+1}
    v_bfe_u32 v{vT+2}, v{vLane}, 2, 2
    v_lshrrev_b32 v{vT}, 1, v{vT}
    v_lshl_add_u32 v{vT}, v{vT}, 3, v{vT+2}
    v_lshlrev_b32 v{vT}, 8, v{vT}
    v_add_u32 v{vT}, {wbase}, v{vT}
    v_lshlrev_b32 v{vT+2}, 6, v{vT+2}
    """)
    for ct in range(2):
        a(f"""
        v_lshrrev_b64 v[{vT+4}:{vT+5}], v{vT+1}, s[{sRun+4*ct}:{sRun+4*ct+1}]
        v_and_b32 v{vT+4}, 31, v{vT+4}
        v_lshlrev_b32 v{vT+4}, 3, v{vT+4}
        v_xor_b32 v{vT+4}, v{vT+4}, v{vT+2}
        v_add_u32 v{vWa[ct]}, v{vT}, v{vT+4}
        """)

def post_flags(t, flags):
    if "nomfma" in flags: t="\n".join(l for l in t.split("\n") if "v_mfma" not in l and "ds_read" not in l)+"\n"
    if "nodma" in flags: t="\n".join(l for l in t.split("\n") if " lds" not in l)+"\n"
    if "nostore" in flags: t="\n".join(l for l in t.split("\n") if "buffer_store" not in l)+"\n"
    if "sc1x4" in flags: t="\n".join(l+" sc1" if "buffer_store_dwordx4" in l else l for l in t.split("\n"))+"\n"
    if "ntx" in flags: t="\n".join(l.replace(" offen"," offen nt") if "buffer_load" in l and "s[8:11]" in l else l for l in t.split("\n"))+"\n"
    if "ntw" in flags: t="\n".join(l.replace(" offen"," offen nt") if "buffer_load" in l and "s[12:15]" in l else l for l in t.split("\n"))+"\n"
    if "s1x" in flags: t="\n".join(l.replace(" offen"," offen sc1") if "buffer_load" in l and "s[8:11]" in l else l for l in t.split("\n"))+"\n"
    for f,sfx in (("sc1"," sc1"),("nt"," nt"),("sc01"," sc0 sc1"),("sc1nt"," sc1 nt")):
        if f in flags: t="\n".join(l+sfx if "buffer_store" in l else l for l in t.split("\n"))+"\n"
    return t

def wot_prep(a,name,vLane,sW,sBlk):
    vT=8; vWd=[[16+u for u in range(5)],[21+u for u in range(5)]]; vWa=26; vL16=27; F=28
    sWm=12; sD=16
    a(f"""
    s_mul_i32 s35, s{sBlk}, 24
    s_add_u32 s36, s0, s35
    s_addc_u32 s37, s1, 0
    s_load_dwordx2 s[6:7], s[36:37], 16
    s_lshl_b32 s33, s61, 1
    s_add_u32 s33, s33, s60
    s_sub_u32 s33, s33, 30
    s_mul_i32 s26, s33, 160
    s_lshl_b32 s34, s{sBlk}, 3
    s_add_u32 s34, s34, s33
    s_mul_i32 s34, s34, {WOT_IMG}
    s_add_u32 s34, s34, {WOT_OFF}
    s_add_u32 s{sD}, s38, s34
    s_addc_u32 s{sD+1}, s39, 0
    s_mov_b32 s{sD+2}, {WOT_IMG}
    s_mov_b32 s{sD+3}, 0x20000
    s_mov_b32 s{sWm+2}, {640*1280}
    s_mov_b32 s{sWm+3}, 0x20000
    v_lshlrev_b32 v{vL16}, 4, v{vLane}
    """)
    for u in range(5):
        a(f"""
        v_add_u32 v{vT+2}, {64*u}, v{vLane}
        v_mul_u32_u24 v{vT+3}, 6554, v{vT+2}
        v_lshrrev_b32 v{vT+3}, 16, v{vT+3}
        v_mul_u32_u24 v{vT+4}, 10, v{vT+3}
        v_sub_u32 v{vT+2}, v{vT+2}, v{vT+4}
        v_lshlrev_b32 v{vT+2}, 4, v{vT+2}
        v_lshrrev_b32 v{vT+4}, 4, v{vT+3}
        v_bfe_u32 v{vT+5}, v{vT+3}, 2, 1
        v_mul_u32_u24 v{vT+5}, 10, v{vT+5}
        v_bfe_u32 v{vT+6}, v{vT+3}, 3, 1
        v_and_b32 v{vT+7}, 3, v{vT+3}
        v_lshl_add_u32 v{vT+1}, v{vT+6}, 2, v{vT+7}
        v_mad_u32_u24 v{vT+7}, v{vT+4}, 20, v{vT+5}
        v_add_u32 v{vT+7}, v{vT+7}, v{vT+1}
        v_mul_u32_u24 v{vT+7}, 1280, v{vT+7}
        v_add_u32 v{vWd[0][u]}, v{vT+7}, v{vT+2}
        v_mul_u32_u24 v{vT+4}, 80, v{vT+4}
        v_add_u32 v{vT+4}, v{vT+4}, v{vT+5}
        v_mad_u32_u24 v{vT+4}, v{vT+6}, 40, v{vT+4}
        v_bfe_u32 v{vT+5}, v{vT+3}, 1, 1
        v_mad_u32_u24 v{vT+4}, v{vT+5}, 20, v{vT+4}
        v_and_b32 v{vT+5}, 1, v{vT+3}
        v_add3_u32 v{vT+4}, v{vT+4}, v{vT+5}, 8
        v_mul_u32_u24 v{vT+4}, 1280, v{vT+4}
        v_add_u32 v{vWd[1][u]}, v{vT+4}, v{vT+2}
        """)
    a(f"""
    v_lshrrev_b32 v{vT}, 4, v{vLane}
    v_lshrrev_b32 v{vT+2}, 1, v{vT}
    v_lshlrev_b32 v{vT+2}, 4, v{vT+2}
    v_and_b32 v{vT+3}, 1, v{vT}
    v_lshl_add_u32 v{vT+2}, v{vT+3}, 2, v{vT+2}
    v_bfe_u32 v{vT+3}, v{vLane}, 2, 2
    v_add_u32 v{vT+2}, v{vT+2}, v{vT+3}
    v_mul_u32_u24 v{vT+2}, 160, v{vT+2}
    v_and_b32 v{vT+3}, 3, v{vLane}
    v_lshl_add_u32 v{vWa}, v{vT+3}, 3, v{vT+2}
    s_mul_i32 s27, s{sW}, 5120
    v_add_u32 v{vWa}, s27, v{vWa}
    s_mul_i32 s34, s{sW}, {40*1280}
    s_add_u32 s34, s34, s26
    s_add_u32 s35, s34, {320*1280}
    s_mul_i32 s36, s{sW}, {160*1280}
    s_add_u32 s36, s36, s26
    s_waitcnt lgkmcnt(0)
    s_mov_b32 s{sWm}, s6
    s_mov_b32 s{sWm+1}, s7
    """)
    def stage(r):
        for u in range(5):
            a(f"s_add_u32 m0, s27, {r*40960+u*1024}\ns_nop 0")
            a(f"buffer_load_dwordx4 v{vWd[r==2][u]}, s[{sWm}:{sWm+3}], s{34+r} offen lds")
    def out(r):
        for c in range(5):
            for sec in range(2): a(f"ds_read_b64_tr_b16 {vr(F+20*r+4*c+2*sec,2)}, v{vWa} offset:{sec*1280+c*32}")
        a(f"v_add_u32 v{vWa}, 40960, v{vWa}\ns_add_u32 s37, s27, {r*40960}\ns_add_u32 s33, s37, 4096\ns_waitcnt lgkmcnt(0)")
        for c in range(5):
            a(f"buffer_store_dwordx4 {vr(F+20*r+4*c,4)}, v{vL16}, s[{sD}:{sD+3}], {'s37' if c<4 else 's33'} offen offset:{(c&3)*1024}")
    stage(0); stage(1)
    a(f"s_cmp_ge_u32 s{sW}, 4\ns_cbranch_scc1 L_{name}_w2")
    stage(2)
    a("s_waitcnt vmcnt(0)")
    out(0); out(1); out(2)
    a(f"s_endpgm\nL_{name}_w2:\ns_waitcnt vmcnt(0)")
    out(0); out(1)

def gen_qkv(name="qkv_kernel", stamp=False, rot=1, flags=(), pf='', early=True, barpos=1):
    a=Asm(); kernel_header(a,name)
    def ST(i):
        if stamp: a(f"s_memtime s[{64+2*i}:{65+2*i}]"+("\ns_memrealtime s[80:81]" if i==0 else ""))
    NS=3; STG=49152
    vLane=1; vXa=[2,3,4,5]; vWa=[6,7]; vT=8
    vXd=[16,17,18,19]; vWd=[20,21]; vPf=160
    XF=[[24+16*b,28+16*b] for b in range(4)]; WF=[[32+16*b,36+16*b] for b in range(4)]
    ACC=[[88,104],[120,136]]; vSt=152; NV=162
    sX=8; sWm=12; sD=16; sW=20; sC=21; sStg=84
    sXo=25; sWo=26; sKc=27; sTab=40
    sBlk=28; sTb=29; sCb=30; sTyp=31; sM=22; sMask=48
    sGo=56; sScale=58
    a(f"""
    s_cmp_ge_u32 s2, 256
    s_cbranch_scc1 L_{name}_end
    s_lshr_b32 s33, s2, 3
    s_and_b32 s34, s2, 7
    s_lshr_b32 s{sBlk}, s34, 2
    s_mul_i32 s35, s{sBlk}, 24
    s_add_u32 s36, s0, s35
    s_addc_u32 s37, s1, 0
    s_load_dwordx4 s[4:7], s[36:37], 0
    s_load_dwordx2 s[38:39], s[0:1], 64
    """)
    ST(0)
    a(f"""
    v_and_b32 v{vLane}, 63, v0
    v_lshrrev_b32 v{vT}, 6, v0
    s_and_b32 s34, s34, 3
    v_readfirstlane_b32 s{sW}, v{vT}
    s_mov_b32 s60, s33
    s_mov_b32 s61, s34
    s_cmp_ge_u32 s33, 15
    s_cselect_b32 s35, 15, 0
    s_cselect_b32 s{sTb}, 1, 0
    s_sub_u32 s33, s33, s35
    s_lshl_b32 s35, s34, 1
    s_add_u32 s{sTb}, s{sTb}, s35
    s_mul_i32 s{sTyp}, s33, 52
    s_lshr_b32 s{sTyp}, s{sTyp}, 8
    s_mul_i32 s35, s{sTyp}, 5
    s_sub_u32 s{sCb}, s33, s35
    s_mul_i32 s{sKc}, s34, 5
    s_lshr_b32 s{sKc}, s{sKc}, 1
    """)
    if rot==0: a(f"s_mov_b32 s{sKc}, 0")
    a.c("s33 = column block 0..14, sTb = token block, sTyp 0/1/2 = Q/K/V, sCb = block inside the type, sKc = first k chunk")
    a(f"""
    s_cmp_ge_u32 s{sTyp}, 2
    s_cselect_b32 s35, 5, s{sCb}
    s_lshl_b32 s35, s35, 1
    s_and_b32 s36, s{sW}, 1
    s_add_u32 s35, s35, s36
    s_lshl_b32 s35, s35, 5
    s_getpc_b64 s[36:37]
    L_{name}_pc:
    s_add_u32 s36, s36, L_{name}_tab-L_{name}_pc
    s_addc_u32 s37, s37, 0
    s_add_u32 s36, s36, s35
    s_addc_u32 s37, s37, 0
    s_load_dwordx8 s[{sTab}:{sTab+7}], s[36:37], 0
    s_mul_i32 s{sXo}, s{sTb}, {256*1280}
    s_lshl_b32 s{sWo}, s33, 8
    s_mov_b32 s{sX+2}, {2048*1280}
    s_mov_b32 s{sX+3}, 0x20000
    s_mov_b32 s{sWm+2}, {640*3840}
    s_mov_b32 s{sWm+3}, 0x20000
    """)
    a.c("DMA source offsets")
    a(f"""
    v_lshrrev_b32 v{vT}, 3, v{vLane}
    s_lshl_b32 s35, s{sW}, 5
    v_add_u32 v{vT}, s35, v{vT}
    v_mul_u32_u24 v{vT}, 1280, v{vT}
    v_lshrrev_b32 v{vT+1}, 4, v{vLane}
    v_and_b32 v{vT+2}, 7, v{vLane}
    v_xor_b32 v{vT+2}, v{vT+2}, v{vT+1}
    v_lshl_add_u32 v{vXd[0]}, v{vT+2}, 4, v{vT}
    v_xor_b32 v{vT+2}, 4, v{vT+2}
    v_lshl_add_u32 v{vXd[1]}, v{vT+2}, 4, v{vT}
    v_add_u32 v{vXd[1]}, {8*1280}, v{vXd[1]}
    v_add_u32 v{vXd[2]}, {16*1280}, v{vXd[0]}
    v_add_u32 v{vXd[3]}, {16*1280}, v{vXd[1]}
    s_lshl_b32 s35, s{sW}, 3
    v_add_u32 v{vT}, s35, v{vT+1}
    v_mul_u32_u24 v{vT}, 3840, v{vT}
    v_and_b32 v{vT+2}, 15, v{vLane}
    v_lshlrev_b32 v{vT+1}, 2, v{vT+1}
    v_xor_b32 v{vT+2}, v{vT+2}, v{vT+1}
    v_lshl_add_u32 v{vWd[0]}, v{vT+2}, 4, v{vT}
    v_add_u32 v{vWd[1]}, {4*3840}, v{vWd[0]}
    s_lshl_b32 s{sM}, s{sW}, 12
    s_lshl_b32 s{sM+1}, s{sW}, 11
    s_add_u32 s{sM+1}, s{sM+1}, 32768
    s_mov_b32 s{sStg}, 0
    """)
    npf=0
    if pf:
        a.c("sequential first touch of this XCD's share of x (512 rows) and W (160 rows): 1/32 of it per workgroup, one dword per 64 bytes")
        a(f"""
        v_lshlrev_b32 v{vT+4}, 6, v0
        v_mov_b32 v{vT+5}, 0x7f000000
        v_cmp_gt_u32 vcc, 320, v0
        s_mul_i32 s62, s61, {512*1280}
        s_mul_i32 s35, s60, 20480
        s_add_u32 s62, s62, s35
        s_mul_i32 s63, s61, {160*3840}
        s_mul_i32 s35, s60, 19200
        s_add_u32 s63, s63, s35
        v_cndmask_b32 v{vT+4}, v{vT+5}, v{vT+4}, vcc
        """)
    a(f"""
    s_waitcnt lgkmcnt(0)
    s_mov_b32 s{sX}, s4
    s_mov_b32 s{sX+1}, s5
    s_mov_b32 s{sWm}, s6
    s_mov_b32 s{sWm+1}, s7
    """)
    def prefetch():
        a(f"""
        s_cmp_ge_u32 s{sW}, 5
        s_cbranch_scc1 L_{name}_npf{len(a.lines)}
        """)
        lab=a.lines[-1].split()[-1]
        a(f"""
        buffer_load_dword v{vPf}, v{vT+4}, s[{sX}:{sX+3}], s62 offen
        buffer_load_dword v{vPf+1}, v{vT+4}, s[{sWm}:{sWm+3}], s63 offen
        {lab}:
        """)
    a(f"s_cmp_ge_u32 s60, 30\ns_cbranch_scc1 L_{name}_idle")
    def dma(stg=None, groups=False):
        st=f"s{sStg+3}" if stg is None else str(stg*STG)
        G=[[f"s_lshl_b32 s34, s{sKc}, 7", f"s_add_u32 s34, s34, s{sXo}", f"s_mul_i32 s35, s{sKc}, {64*3840}",
            f"s_add_u32 s35, s35, s{sWo}", f"s_add_u32 s36, s{sM}, {st}", f"s_add_u32 s37, s{sM+1}, {st}",
            f"s_add_u32 s{sKc}, s{sKc}, 1", f"s_cmp_eq_u32 s{sKc}, 10", f"s_cselect_b32 s{sKc}, 0, s{sKc}"]]
        for k,i in [("x",0),("w",0),("x",1),("w",1),("x",2),("x",3)]:
            g=[f"s_add_u32 m0, s{36 if k=='x' else 37}, {i*1024}", "s_nop 0"]
            if k=="x": g.append(f"buffer_load_dwordx4 v{vXd[i]}, s[{sX}:{sX+3}], s34 offen lds")
            else: g.append(f"buffer_load_dwordx4 v{vWd[i]}, s[{sWm}:{sWm+3}], s35 offen lds")
            G.append(g)
        if groups: return G
        for g in G:
            for l in g: a(l)
    def pfl():
        if "x" in pf: a(f"buffer_load_dword v{vPf}, v{vT+4}, s[{sX}:{sX+3}], s62 offen")
        if "w" in pf: a(f"buffer_load_dword v{vPf+1}, v{vT+4}, s[{sWm}:{sWm+3}], s63 offen")
    if "f" in pf: pfl()
    dma(0)
    if pf and "f" not in pf:
        pfl(); npf=len(pf)
    ST(1)
    a.c("fragment addresses")
    a(f"""
    v_and_b32 v{vT}, 31, v{vLane}
    s_lshr_b32 s35, s{sW}, 1
    s_lshl_b32 s35, s35, 13
    v_lshlrev_b32 v{vT+1}, 7, v{vT}
    v_add_u32 v{vT+1}, s35, v{vT+1}
    v_bfe_u32 v{vT+2}, v{vT}, 1, 3
    v_lshrrev_b32 v{vT+3}, 5, v{vLane}
    v_xor_b32 v{vT+2}, v{vT+2}, v{vT+3}
    v_lshl_add_u32 v{vXa[0]}, v{vT+2}, 4, v{vT+1}
    v_xor_b32 v{vXa[1]}, 32, v{vXa[0]}
    v_xor_b32 v{vXa[2]}, 64, v{vXa[0]}
    v_xor_b32 v{vXa[3]}, 96, v{vXa[0]}
    """)
    w_frag_addr(a,vWa,vLane,vT,sTab,32768)
    for tt in range(2):
        for ct in range(2):
            for j in range(16): a(f"v_mov_b32 v{ACC[tt][ct]+j}, 0")
    dma(1)
    lp=Loop(a,name,NS,STG,ACC,XF,WF,vXa,vWa,lambda tt,ks:tt*4096,6,dma,sC,sStg,early)
    a(f"s_mov_b32 s{sC}, 0\ns_cmp_eq_u32 s{sTyp}, 2\ns_cbranch_scc1 L_{name}_v")
    a.c("destination: s[sD] = ws + base(type) + blk*32*IMG ; s34 = IMG ; sGo = group offset")
    a(f"""
    s_lshl_b32 s34, {Q_IMG}, s{sTyp}
    s_lshl_b32 s35, 5120, s{sTyp}
    s_cmp_eq_u32 s{sTyp}, 0
    s_cselect_b32 s36, {Q_OFF}, {KV_OFF}
    s_mov_b32 s{sScale}, {f32bits(QSCALE):#x}
    s_mov_b32 s{sScale+1}, {f32bits(QSCALE):#x}
    s_lshl_b32 s{sD+2}, s34, 5
    s_mov_b32 s{sD+3}, 0x20000
    s_mul_i32 s37, s{sD+2}, s{sBlk}
    s_add_u32 s36, s36, s37
    s_add_u32 s{sD}, s38, s36
    s_addc_u32 s{sD+1}, s39, 0
    s_lshl_b32 s36, s{sTb}, 1
    s_lshr_b32 s37, s{sW}, 2
    s_add_u32 s36, s36, s37
    s_mul_i32 s{sGo}, s35, s36
    s_bfe_u32 s36, s{sW}, 0x10001
    s_lshl_b32 s37, s36, 9
    s_add_u32 s37, s37, 4096
    s_lshl_b32 s36, s36, 11
    v_and_b32 v{vT}, 0x13, v{vLane}
    v_bfe_u32 v{vT+1}, v{vLane}, 2, 1
    v_lshl_or_b32 v{vT}, v{vT+1}, 3, v{vT}
    v_bfe_u32 v{vT+1}, v{vLane}, 3, 1
    v_lshl_or_b32 v{vT}, v{vT+1}, 2, v{vT}
    v_lshlrev_b32 v{vT}, 4, v{vT}
    v_lshrrev_b32 v{vT+1}, 5, v{vLane}
    v_lshlrev_b32 v{vT+1}, 4, v{vT+1}
    """)
    a.c("vT = kappa*16, vT+1 = 16*h (bit position of this half's two table bytes)")
    for ct in range(2):
        for qp in range(2):
            sd=sTab+4*ct+2+qp; n=2*ct+qp; mk=f"s[{sMask+2*n}:{sMask+2*n+1}]"
            a(f"""
            v_lshrrev_b32 v{vT+2}, v{vT+1}, s{sd}
            v_and_b32 v{vT+3}, 31, v{vT+2}
            v_mul_lo_u32 v{vT+3}, v{vT+3}, s34
            v_bfe_u32 v{vT+6}, v{vT+2}, 8, 5
            v_mul_lo_u32 v{vSt+2*n+1}, v{vT+6}, s34
            v_bfe_u32 v{vT+5}, v{vT+2}, 6, 1
            v_lshl_add_u32 v{vT+5}, v{vT+5}, 9, s36
            v_and_b32 v{vT+2}, 32, v{vT+2}
            v_cmp_ne_u32 {mk}, 0, v{vT+2}
            v_mov_b32 v{vT+6}, s37
            v_add_u32 v{vT+7}, 1024, v{vT+5}
            v_cndmask_b32 v{vT+5}, v{vT+5}, v{vT+6}, {mk}
            v_cndmask_b32 v{vT+7}, v{vT+7}, v{vT+6}, {mk}
            v_add3_u32 v{vSt+2*n}, v{vT+3}, v{vT+5}, v{vT}
            v_add3_u32 v{vSt+2*n+1}, v{vSt+2*n+1}, v{vT+7}, v{vT}
            """)
    def start():
        a(f"s_mov_b32 s{sStg+3}, {(NS-1)*STG}")
        ST(2)
        a(f"s_waitcnt vmcnt({6*(NS-2)+npf})\ns_barrier")
        ST(3)
        lp.prologue_reads()
    start()
    lp.emit("qk",False,barpos)
    ST(4)
    a(f"s_cmp_lg_u32 s{sTyp}, 0\ns_nop 6\ns_waitcnt lgkmcnt(0)\ns_cbranch_scc1 L_{name}_nsc")
    for ct in range(2):
        for tt in range(2):
            b=ACC[tt][ct]
            for j in range(0,16,2): a(f"v_pk_mul_f32 {vr(b+j,2)}, {vr(b+j,2)}, s[{sScale}:{sScale+1}]")
    a(f"L_{name}_nsc:")
    P=24
    for ct in range(2):
        for qp in range(2):
            n=2*ct+qp; st=P+8*n; mk=f"s[{sMask+2*n}:{sMask+2*n+1}]"
            b0=ACC[0][ct]+8*qp; b1=ACC[1][ct]+8*qp
            for k in range(2):
                a(f"v_cvt_pk_bf16_f32 v{st+k}, v{b0+2*k}, v{b0+2*k+1}")
                a(f"v_cvt_pk_bf16_f32 v{b0+k}, v{b0+4+2*k}, v{b0+5+2*k}")
            for k in range(2):
                a(f"v_cvt_pk_bf16_f32 v{b0+2+k}, v{b1+2*k}, v{b1+2*k+1}")
                a(f"v_cvt_pk_bf16_f32 v{st+6+k}, v{b1+4+2*k}, v{b1+5+2*k}")
            for k in range(2):
                a(f"v_cndmask_b32 v{st+2+k}, v{b0+k}, v{b0+2+k}, {mk}")
                a(f"v_cndmask_b32 v{st+4+k}, v{b0+2+k}, v{b0+k}, {mk}")
            a(f"buffer_store_dwordx4 {vr(st,4)}, v{vSt+2*n}, s[{sD}:{sD+3}], s{sGo} offen")
            a(f"buffer_store_dwordx4 {vr(st+4,4)}, v{vSt+2*n+1}, s[{sD}:{sD+3}], s{sGo} offen")
    a(f"s_branch L_{name}_done")
    a(f"L_{name}_v:")
    a(f"""
    s_mov_b32 s{sD+2}, {32*KV_IMG}
    s_mov_b32 s{sD+3}, 0x20000
    s_mul_i32 s37, s{sBlk}, {32*KV_IMG}
    s_add_u32 s{sD}, s38, s37
    s_addc_u32 s{sD+1}, s39, 0
    s_lshl_b32 s36, s{sTb}, 1
    s_lshr_b32 s37, s{sW}, 2
    s_add_u32 s36, s36, s37
    s_mul_i32 s35, s36, 10240
    s_bfe_u32 s36, s{sW}, 0x10001
    s_mul_i32 s36, s36, 2560
    s_add_u32 s35, s35, s36
    s_add_u32 s{sGo}, s35, 5120
    s_lshl_b32 s36, s{sCb}, 7
    s_and_b32 s37, s{sW}, 1
    s_lshl_b32 s37, s37, 6
    s_add_u32 s36, s36, s37
    s_mov_b32 s34, {KV_IMG}
    v_and_b32 v{vT}, 31, v{vLane}
    v_add_u32 v{vT}, s36, v{vT}
    v_lshrrev_b32 v{vT+1}, 5, v{vLane}
    v_mul_u32_u24 v{vT+1}, 320, v{vT+1}
    """)
    for ct in range(2):
        a(f"""
        v_mul_u32_u24 v{vT+2}, 3277, v{vT}
        v_lshrrev_b32 v{vT+2}, 16, v{vT+2}
        v_mul_u32_u24 v{vT+3}, 20, v{vT+2}
        v_sub_u32 v{vT+3}, v{vT}, v{vT+3}
        v_mul_lo_u32 v{vT+2}, v{vT+2}, s34
        v_add_u32 v{vT+4}, 6, v{vT+3}
        v_cmp_gt_u32 vcc, 4, v{vT+3}
        v_subrev_u32 v{vT+5}, 10, v{vT+3}
        v_add_u32 v{vT}, 32, v{vT}
        v_cndmask_b32 v{vT+4}, v{vT+4}, v{vT+3}, vcc
        v_cmp_lt_u32 vcc, 13, v{vT+3}
        v_add_u32 v{vT+2}, v{vT+2}, v{vT+1}
        s_nop 0
        v_cndmask_b32 v{vT+4}, v{vT+4}, v{vT+5}, vcc
        v_lshl_add_u32 v{vSt+ct}, v{vT+4}, 4, v{vT+2}
        """)
    start()
    lp.emit("vv",True,barpos)
    ST(4)
    a("s_nop 7")
    for tt,ct in ((0,0),(0,1),(1,1),(1,0)):
        b=ACC[tt][ct]
        for j in range(8): a(f"v_cvt_pk_bf16_f32 v{b+j}, v{b+2*j}, v{b+2*j+1}")
        for s in range(2):
            a(f"buffer_store_dwordx4 {vr(b+4*s,4)}, v{vSt+ct}, s[{sD}:{sD+3}], s{sGo} offen offset:{tt*1280+s*640}")
    a(f"L_{name}_done:")
    ST(5); ST(6)
    if stamp: stamp_store(a,3,sW,64<<20)
    a("s_endpgm")
    a(f"L_{name}_idle:")
    pfl()
    wot_prep(a,name,vLane,sW,sBlk)
    a(f"L_{name}_end:\ns_endpgm")
    a(".p2align 5")
    a(f"L_{name}_tab:")
    for c,row in tables.table():
        for runs,dest in row:
            a(".byte "+", ".join(str(x) for x in runs+dest))
    a(".p2align 2")
    return post_flags(a.text(),flags), kernel_desc(name,NV,96)
```

```python
from asmlib import *
import tables2
from gemm import Loop, w_frag_addr, f32bits

F1_OFF=(WS_USED+4095)//4096*4096
XT_OFF=F1_OFF+2048
F2_OFF=XT_OFF+2048
NAME="concat_heads__mha_block__mha_block__prompt_kernel"
sWS=88; sNon=90; sDbg=92; sWave=94
SPIN=1<<22

V=[[168+8*t+4*s for s in range(2)] for t in range(4)]
O=[200,216]; W0=232; vKb=242; vVb=243; vIdx=244; vFl=245; vKn=246; vVn=247; vQ2=248

class Gen:
    def __init__(g, stamp=False, opt=None):
        g.a=Asm(); g.tail=Asm(); g.stamp=stamp; g.o=dict(opt or {}); g.nst=0
    def RT(g, i):
        if g.stamp:
            g.a(f"s_memrealtime s[96:97]\ns_waitcnt lgkmcnt(0)\nv_writelane_b32 v255, s96, {i}")
    def sc(g, key):
        return g.o.get(key," sc1")

    def signal(g, a, off_s, tag, loc):
        a(f"""
        v_mov_b32 v8, s{off_s}
        v_mov_b32 v10, s{sNon}
        v_mov_b32 v11, s{sNon+1}
        s_mov_b64 exec, 1
        s_cmp_lg_u32 s{loc}, 0
        s_cbranch_scc1 L_sig_{tag}
        global_store_dwordx2 v8, v[10:11], s[{sWS}:{sWS+1}] sc1
        s_branch L_sigd_{tag}
        L_sig_{tag}:
        global_store_dwordx2 v8, v[10:11], s[{sWS}:{sWS+1}]
        L_sigd_{tag}:
        s_mov_b64 exec, -1
        """)
    def poll(g, a, voff, tag, vd):
        a(f"""
        s_mov_b32 s95, {SPIN}
        {"s_branch L_pollc_"+tag if g.o.get("spec"+tag,0) else ""}
        L_poll_{tag}:
        global_load_dwordx2 v[{vd}:{vd+1}], v{voff}, s[{sWS}:{sWS+1}] sc1
        s_waitcnt vmcnt(0)
        L_pollc_{tag}:
        v_cmp_eq_u64 vcc, s[{sNon}:{sNon+1}], v[{vd}:{vd+1}]
        s_sub_u32 s95, s95, 1
        s_cmp_eq_u64 vcc, -1
        s_cbranch_scc1 L_polled_{tag}
        {"s_sleep %d"%g.o["sleep"] if g.o.get("sleep") else ""}
        s_cmp_lg_u32 s95, 0
        s_cbranch_scc1 L_poll_{tag}
        L_polled_{tag}:
        """)
    def get_nonce(g, a, tag, vN):
        a(f"""
        s_mov_b32 s95, {SPIN}
        L_non_{tag}:
        v_readfirstlane_b32 s{sNon}, v{vN}
        v_readfirstlane_b32 s{sNon+1}, v{vN+1}
        s_sub_u32 s95, s95, 1
        s_nop 2
        s_cmp_lg_u32 s{sNon}, 0
        s_cbranch_scc1 L_nond_{tag}
        s_cmp_eq_u32 s95, 0
        s_cbranch_scc1 L_nond_{tag}
        v_mov_b32 v8, 0
        s_sleep 1
        global_load_dwordx2 v[{vN}:{vN+1}], v8, s[{sDbg}:{sDbg+1}] sc1
        s_waitcnt vmcnt(0)
        s_branch L_non_{tag}
        L_nond_{tag}:
        """)

    def local_flag(g, a, vX):
        if g.o.get("local","check")=="force": a("s_mov_b32 s63, 1"); return
        if g.o.get("local","check")=="off": a("s_mov_b32 s63, 0"); return
        a(f"""
        s_getreg_b32 s63, hwreg(HW_REG_XCC_ID, 0, 4)
        s_xor_b32 s42, s{sNon}, s63
        s_mov_b32 s43, s{sNon+1}
        v_cmp_eq_u64 vcc, s[42:43], v[{vX}:{vX+1}]
        s_cmp_lg_u32 s{sNon}, 0
        s_cselect_b32 s63, 1, 0
        s_cmp_eq_u64 vcc, -1
        s_cselect_b32 s63, s63, 0
        """)

    def flag1_addr(g, a):
        a(f"""
        s_and_b32 s40, s2, 7
        s_lshl_b32 s40, s40, 8
        s_add_u32 s40, s40, {F1_OFF}
        v_and_b32 v{vFl}, 31, v1
        v_lshl_add_u32 v{vFl}, v{vFl}, 3, s40
        """)

    def attn_setup(g):
        import re
        a=Asm(); vLane=1; vT=8
        a.c("per-lane V address: h*320 + slot(dim(row))*16 + 5120")
        a(f"""
        v_and_b32 v{vT}, 31, v{vLane}
        v_bfe_u32 v{vT+1}, v{vT}, 2, 1
        v_and_b32 v{vT+2}, 3, v{vT}
        v_lshrrev_b32 v{vT+3}, 3, v{vT}
        v_lshl_add_u32 v{vT+2}, v{vT+3}, 2, v{vT+2}
        v_mul_u32_u24 v{vT+1}, 10, v{vT+1}
        v_add_u32 v{vT+1}, v{vT+1}, v{vT+2}
        v_add_u32 v{vT+3}, 6, v{vT+1}
        v_cmp_gt_u32 vcc, 4, v{vT+1}
        v_lshlrev_b32 v{vKb}, 4, v{vLane}
        s_nop 0
        v_cndmask_b32 v{vT+3}, v{vT+3}, v{vT+1}, vcc
        v_cmp_lt_u32 vcc, 13, v{vT+1}
        v_subrev_u32 v{vVb}, 10, v{vT+1}
        s_nop 0
        v_cndmask_b32 v{vT+3}, v{vT+3}, v{vVb}, vcc
        v_lshlrev_b32 v{vT+3}, 4, v{vT+3}
        v_lshrrev_b32 v{vVb}, 5, v{vLane}
        v_mul_u32_u24 v{vVb}, 320, v{vVb}
        v_add_u32 v{vVb}, v{vVb}, v{vT+3}
        v_add_u32 v{vVb}, 5120, v{vVb}
        v_cmp_eq_u32 vcc, 10, v{vT+2}
        v_mov_b32 v{vIdx}, 0xdddddddd
        v_mov_b32 v{vT+3}, 0x3f803f80
        v_cndmask_b32 v{vT+3}, 0, v{vT+3}, vcc
        v_lshlrev_b32 v{vQ2}, 4, v{vT}
        """)
        for t in range(4):
            for s in range(2):
                for j in range(4): a(f"v_mov_b32 v{V[t][s]+j}, v{vT+3}")
        for q in range(2):
            for j in range(16): a(f"v_mov_b32 v{O[q]+j}, 0")
        a.c("Wo staging: piece n = 64u + lane of a k step -> LDS row rho = n/10, 16-byte column n%10; source row in the k order of the O image")
        Tm=8
        for u in range(5):
            a(f"""
            v_add_u32 v{Tm}, {64*u}, v{vLane}
            v_mul_u32_u24 v{Tm+1}, 6554, v{Tm}
            v_lshrrev_b32 v{Tm+1}, 16, v{Tm+1}
            v_mul_u32_u24 v{Tm+2}, 10, v{Tm+1}
            v_sub_u32 v{Tm}, v{Tm}, v{Tm+2}
            v_lshlrev_b32 v{Tm}, 4, v{Tm}
            v_lshrrev_b32 v{Tm+2}, 4, v{Tm+1}
            v_bfe_u32 v{Tm+3}, v{Tm+1}, 2, 1
            v_mul_u32_u24 v{Tm+3}, 10, v{Tm+3}
            v_bfe_u32 v{Tm+4}, v{Tm+1}, 3, 1
            v_and_b32 v{Tm+5}, 3, v{Tm+1}
            v_lshl_add_u32 v{Tm+6}, v{Tm+4}, 2, v{Tm+5}
            v_mad_u32_u24 v{Tm+5}, v{Tm+2}, 20, v{Tm+3}
            v_add_u32 v{Tm+5}, v{Tm+5}, v{Tm+6}
            v_mul_u32_u24 v{Tm+5}, 1280, v{Tm+5}
            v_add_u32 v{W0+u}, v{Tm+5}, v{Tm}
            v_mul_u32_u24 v{Tm+2}, 80, v{Tm+2}
            v_add_u32 v{Tm+2}, v{Tm+2}, v{Tm+3}
            v_mad_u32_u24 v{Tm+2}, v{Tm+4}, 40, v{Tm+2}
            v_bfe_u32 v{Tm+3}, v{Tm+1}, 1, 1
            v_mad_u32_u24 v{Tm+2}, v{Tm+3}, 20, v{Tm+2}
            v_and_b32 v{Tm+3}, 1, v{Tm+1}
            v_add3_u32 v{Tm+2}, v{Tm+2}, v{Tm+3}, 8
            v_mul_u32_u24 v{Tm+2}, 1280, v{Tm+2}
            v_add_u32 v{W0+5+u}, v{Tm+2}, v{Tm}
            """)
        a(f"""
        v_mov_b32 v{vKn}, v{vKb}
        v_mov_b32 v{vVn}, v{vVb}
        """)
        tmp={8:249,9:250,10:251,11:252,12:253,13:254,14:22}
        return [re.sub(r"\bv(8|9|1[0-4])\b",lambda m:f"v{tmp[int(m.group(1))]}",l) for l in a.lines if not l.strip().startswith(";")]

    def qkv(g):
        a=g.a; name="p1"; st=g.sc("st1")
        NS=3; STG=49152; barpos=g.o.get("barpos",1)
        vLane=1; vXa=[2,3,4,5]; vWa=[6,7]; vT=8
        vXd=[16,17,18,19]; vWd=[20,21]; vN=160
        XF=[[24+16*b,28+16*b] for b in range(4)]; WF=[[32+16*b,36+16*b] for b in range(4)]
        ACC=[[88,104],[120,136]]; vSt=152
        sX=8; sWm=12; sD=16; sW=sWave; sC=21; sStg=84
        sXo=25; sWo=26; sKc=27; sTab=40; sBlk=28; sTb=29; sCb=30; sTyp=31; sM=22; sMask=48; sGo=56; sScale=58; sFl=62
        r1,r2,r3=g.o.get("rot",(1,0,5)); lx=g.o.get("ldx",""); lw=g.o.get("ldw","")
        assert r3*3//2+7*r1+3*r2<69
        a(f"""
        s_cmp_ge_u32 s2, 256
        s_cbranch_scc1 L_end
        s_bfe_u32 s{sBlk}, s2, 0x10002
        s_mul_i32 s35, s{sBlk}, 24
        s_load_dwordx4 s[4:7], s[0:1], s35
        s_load_dwordx4 s[72:75], s[0:1], 56
        s_add_u32 s35, s35, 16
        s_load_dwordx2 s[76:77], s[0:1], s35
        s_load_dwordx2 s[78:79], s[0:1], 48
        """)
        if g.stamp: a("s_memrealtime s[96:97]")
        a.c("s61 = head group, sTb = token block, sCb = column group, sTyp = half = 2*sCb + (wave&1), sKc = first k chunk")
        a(f"""
        v_lshrrev_b32 v{vT}, 6, v0
        v_and_b32 v{vLane}, 63, v0
        s_and_b32 s61, s2, 3
        v_readfirstlane_b32 s{sW}, v{vT}
        s_lshr_b32 s{sTb}, s2, 5
        s_bfe_u32 s{sCb}, s2, 0x20003
        s_mul_i32 s{sKc}, s61, {r3}
        s_lshr_b32 s{sKc}, s{sKc}, 1
        s_mul_i32 s35, s{sTb}, {r1}
        s_add_u32 s{sKc}, s{sKc}, s35
        s_mul_i32 s35, s{sCb}, {r2}
        s_add_u32 s{sKc}, s{sKc}, s35
        s_mul_i32 s35, s{sKc}, 26
        s_lshr_b32 s35, s35, 8
        s_mul_i32 s35, s35, 10
        s_sub_u32 s{sKc}, s{sKc}, s35
        s_mul_i32 s{sXo}, s{sTb}, {256*1280}
        s_mul_i32 s{sWo}, s61, 320
        s_mov_b32 s{sX+2}, {2048*1280}
        s_mov_b32 s{sX+3}, 0x20000
        s_mov_b32 s{sWm+2}, {640*3840}
        s_mov_b32 s{sWm+3}, 0x20000
        """)
        a.c("DMA source offsets; W columns: 16-byte piece c of the LDS row comes from byte 16c + (c < s64 ? s65 : s66)")
        a(f"""
        v_lshrrev_b32 v{vT}, 3, v{vLane}
        s_lshl_b32 s35, s{sW}, 5
        v_add_u32 v{vT}, s35, v{vT}
        v_mul_u32_u24 v{vT}, 1280, v{vT}
        v_lshrrev_b32 v{vT+1}, 4, v{vLane}
        v_and_b32 v{vT+2}, 7, v{vLane}
        v_xor_b32 v{vT+2}, v{vT+2}, v{vT+1}
        v_lshl_add_u32 v{vXd[0]}, v{vT+2}, 4, v{vT}
        v_xor_b32 v{vT+2}, 4, v{vT+2}
        v_lshl_add_u32 v{vXd[1]}, v{vT+2}, 4, v{vT}
        v_add_u32 v{vXd[1]}, {8*1280}, v{vXd[1]}
        v_add_u32 v{vXd[2]}, {16*1280}, v{vXd[0]}
        v_add_u32 v{vXd[3]}, {16*1280}, v{vXd[1]}
        s_lshl_b32 s64, s{sCb}, 2
        s_mul_i32 s66, s{sCb}, 1216
        s_sub_u32 s65, s66, 960
        s_min_u32 s66, s66, 2624
        s_cmp_eq_u32 s{sCb}, 0
        s_cselect_b32 s65, 0, s65
        s_lshl_b32 s35, s{sW}, 3
        v_add_u32 v{vT}, s35, v{vT+1}
        v_mul_u32_u24 v{vT}, 3840, v{vT}
        v_and_b32 v{vT+2}, 15, v{vLane}
        v_lshlrev_b32 v{vT+1}, 2, v{vT+1}
        v_xor_b32 v{vT+2}, v{vT+2}, v{vT+1}
        v_mov_b32 v{vT+3}, s65
        v_mov_b32 v{vT+4}, s66
        v_cmp_gt_u32 vcc, s64, v{vT+2}
        v_lshl_add_u32 v{vWd[0]}, v{vT+2}, 4, v{vT}
        s_lshl_b32 s{sM}, s{sW}, 12
        v_cndmask_b32 v{vT+3}, v{vT+4}, v{vT+3}, vcc
        s_lshl_b32 s{sM+1}, s{sW}, 11
        s_add_u32 s{sM+1}, s{sM+1}, 32768
        v_add_u32 v{vWd[0]}, v{vWd[0]}, v{vT+3}
        v_add_u32 v{vWd[1]}, {4*3840}, v{vWd[0]}
        """)
        def dma(stg=None, groups=False):
            stn=f"s{sStg+3}" if stg is None else str(stg*STG)
            G=[[f"s_lshl_b32 s34, s{sKc}, 7", f"s_add_u32 s34, s34, s{sXo}", f"s_mul_i32 s35, s{sKc}, {64*3840}",
                f"s_add_u32 s35, s35, s{sWo}", f"s_add_u32 s36, s{sM}, {stn}", f"s_add_u32 s37, s{sM+1}, {stn}",
                f"s_add_u32 s{sKc}, s{sKc}, 1", f"s_cmp_eq_u32 s{sKc}, 10", f"s_cselect_b32 s{sKc}, 0, s{sKc}"]]
            for k,i in [("x",0),("w",0),("x",1),("w",1),("x",2),("x",3)]:
                q=[f"s_add_u32 m0, s{36 if k=='x' else 37}, {i*1024}", "s_nop 0"]
                if k=="x": q.append(f"buffer_load_dwordx4 v{vXd[i]}, s[{sX}:{sX+3}], s34 offen{lx} lds")
                else: q.append(f"buffer_load_dwordx4 v{vWd[i]}, s[{sWm}:{sWm+3}], s35 offen{lw} lds")
                G.append(q)
            if groups: return G
            for q in G:
                for l in q: a(l)
        npf=0
        G=dma(0,groups=True)
        for l in G[0]: a(l)
        a(f"""
        s_add_u32 m0, s36, 0
        s_waitcnt lgkmcnt(0)
        s_mov_b32 s{sX}, s4
        s_mov_b32 s{sX+1}, s5
        s_mov_b32 s{sWm}, s6
        s_mov_b32 s{sWm+1}, s7
        """)
        a(G[1][-1])
        for q in G[2:]:
            for l in q: a(l)
        if g.stamp: a("v_writelane_b32 v255, s96, 0")
        a(f"""
        s_lshl_b32 s{sTyp}, s{sCb}, 1
        s_and_b32 s36, s{sW}, 1
        s_add_u32 s{sTyp}, s{sTyp}, s36
        s_lshl_b32 s35, s{sTyp}, 5
        s_getpc_b64 s[36:37]
        L_pc:
        s_add_u32 s36, s36, L_tab-L_pc
        s_addc_u32 s37, s37, 0
        s_load_dwordx8 s[{sTab}:{sTab+7}], s[36:37], s35
        s_mov_b32 s{sDbg}, s72
        s_mov_b32 s{sDbg+1}, s73
        s_mov_b32 s{sWS}, s74
        s_mov_b32 s{sWS+1}, s75
        s_mov_b32 s{sStg}, 0
        s_and_b32 s35, s2, 7
        s_lshl_b32 s{sFl}, s35, 8
        s_and_b32 s35, s2, 0xf8
        s_add_u32 s{sFl}, s{sFl}, s35
        s_add_u32 s{sFl}, s{sFl}, {F1_OFF}
        """)
        if g.o.get("tlb",4)&4:
            a.c("one wave touches every page the later phases use (values unused) so that their address translations are resident")
            STR=g.o.get("tstride",1<<21); NP=(F2_OFF+4096+STR-1)//STR
            a(f"""
            s_cmp_lg_u32 s{sW}, {g.o.get("twave",7)}
            s_cbranch_scc1 L_ntl
            v_min_u32 v8, {NP-1}, v{vLane}
            v_mul_u32_u24 v8, {STR}, v8
            v_min_u32 v9, {5242880//STR}, v{vLane}
            v_mul_u32_u24 v9, {STR}, v9
            v_min_u32 v9, {5242880-4}, v9
            v_mov_b32 v10, 0
            global_load_dword v163, v8, s[74:75] sc1
            global_load_dword v163, v9, s[78:79] sc1
            global_load_dword v163, v10, s[76:77] sc1
            global_load_dword v163, v10, s[72:73] sc1
            L_ntl:
            """)
        a.c("workgroup 0 picks the tag of this launch")
        a(f"""
        s_lshl_b32 s34, s2, 3
        s_add_u32 s34, s34, s{sW}
        s_cmp_lg_u32 s34, 7
        s_cbranch_scc1 L_nt
        s_memrealtime s[34:35]
        s_waitcnt lgkmcnt(0)
        s_or_b32 s34, s34, 0x10
        v_mov_b32 v8, 0
        v_mov_b32 v10, s34
        v_mov_b32 v11, s35
        s_mov_b64 exec, 1
        global_store_dwordx2 v8, v[10:11], s[{sDbg}:{sDbg+1}] sc1
        s_mov_b64 exec, -1
        L_nt:
        """)
        a.c("fragment addresses")
        a(f"""
        v_and_b32 v{vT}, 31, v{vLane}
        s_lshr_b32 s35, s{sW}, 1
        s_lshl_b32 s35, s35, 13
        v_lshlrev_b32 v{vT+1}, 7, v{vT}
        v_add_u32 v{vT+1}, s35, v{vT+1}
        v_bfe_u32 v{vT+2}, v{vT}, 1, 3
        v_lshrrev_b32 v{vT+3}, 5, v{vLane}
        v_xor_b32 v{vT+2}, v{vT+2}, v{vT+3}
        v_lshl_add_u32 v{vXa[0]}, v{vT+2}, 4, v{vT+1}
        v_xor_b32 v{vXa[1]}, 32, v{vXa[0]}
        v_xor_b32 v{vXa[2]}, 64, v{vXa[0]}
        v_xor_b32 v{vXa[3]}, 96, v{vXa[0]}
        """)
        for tt in range(2):
            for ct in range(2):
                for j in range(16): a(f"v_mov_b32 v{ACC[tt][ct]+j}, 0")
        dma(1)
        a("s_waitcnt lgkmcnt(0)")
        w_frag_addr(a,vWa,vLane,vT,sTab,32768)
        lp=Loop(a,name,NS,STG,ACC,XF,WF,vXa,vWa,lambda tt,ks:tt*4096,6,dma,sC,sStg,True)
        a(f"s_mov_b32 s{sC}, 0\ns_cmp_ge_u32 s{sTyp}, 5\ns_cbranch_scc1 L_p1_v")
        a.c("destination per column tile: s[68+ct] = image stride, s[70+ct] = offset of (first head, key group); tile 0 is Q for halves 0..2, tile 1 for halves 0..1")
        a(f"""
        s_mov_b32 s{sScale}, {f32bits(QSCALE):#x}
        s_mov_b32 s{sScale+1}, {f32bits(QSCALE):#x}
        s_lshl_b32 s36, s{sTb}, 1
        s_lshr_b32 s37, s{sW}, 2
        s_add_u32 s36, s36, s37
        s_mul_i32 s36, s36, 5120
        s_lshl_b32 s35, s{sBlk}, 2
        s_add_u32 s35, s35, s61
        s_mul_i32 s35, s35, {8*Q_IMG}
        s_add_u32 s35, s35, s36
        s_lshl_b32 s34, s35, 1
        s_add_u32 s35, s35, {Q_OFF}
        s_mov_b32 s36, {Q_IMG}
        s_cmp_le_u32 s{sTyp}, 2
        s_cselect_b32 s68, s36, {KV_IMG}
        s_cselect_b32 s70, s35, s34
        s_cselect_b32 s72, s{sScale}, 1.0
        s_mov_b32 s73, s72
        s_cmp_le_u32 s{sTyp}, 1
        s_cselect_b32 s69, s36, {KV_IMG}
        s_cselect_b32 s71, s35, s34
        s_cselect_b32 s74, s{sScale}, 1.0
        s_mov_b32 s75, s74
        s_bfe_u32 s36, s{sW}, 0x10001
        s_lshl_b32 s37, s36, 9
        s_add_u32 s37, s37, 4096
        s_lshl_b32 s36, s36, 11
        v_and_b32 v{vT}, 0x13, v{vLane}
        v_bfe_u32 v{vT+1}, v{vLane}, 2, 1
        v_lshl_or_b32 v{vT}, v{vT+1}, 3, v{vT}
        v_bfe_u32 v{vT+1}, v{vLane}, 3, 1
        v_lshl_or_b32 v{vT}, v{vT+1}, 2, v{vT}
        v_lshlrev_b32 v{vT}, 4, v{vT}
        v_lshrrev_b32 v{vT+1}, 5, v{vLane}
        v_lshlrev_b32 v{vT+1}, 4, v{vT+1}
        """)
        for ct in range(2):
            for qp in range(2):
                sd=sTab+4*ct+2+qp; n=2*ct+qp; mk=f"s[{sMask+2*n}:{sMask+2*n+1}]"
                a(f"""
                v_lshrrev_b32 v{vT+2}, v{vT+1}, s{sd}
                v_and_b32 v{vT+3}, 31, v{vT+2}
                v_mul_lo_u32 v{vT+3}, v{vT+3}, s{68+ct}
                v_bfe_u32 v{vT+6}, v{vT+2}, 8, 5
                v_mul_lo_u32 v{vSt+2*n+1}, v{vT+6}, s{68+ct}
                v_bfe_u32 v{vT+5}, v{vT+2}, 6, 1
                v_lshl_add_u32 v{vT+5}, v{vT+5}, 9, s36
                v_and_b32 v{vT+2}, 32, v{vT+2}
                v_cmp_ne_u32 {mk}, 0, v{vT+2}
                v_mov_b32 v{vT+6}, s37
                v_add_u32 v{vT+7}, 1024, v{vT+5}
                v_cndmask_b32 v{vT+5}, v{vT+5}, v{vT+6}, {mk}
                v_cndmask_b32 v{vT+7}, v{vT+7}, v{vT+6}, {mk}
                v_add3_u32 v{vSt+2*n}, v{vT+3}, v{vT+5}, v{vT}
                v_add3_u32 v{vSt+2*n+1}, v{vSt+2*n+1}, v{vT+7}, v{vT}
                """)
        def start():
            g.flag1_addr(a)
            a(f"s_mov_b32 s{sD}, s{sWS}\ns_mov_b32 s{sD+1}, s{sWS+1}\ns_mov_b32 s{sD+2}, {O_OFF}\ns_mov_b32 s{sD+3}, 0x20000")
            a(f"s_mov_b32 s{sStg+3}, {(NS-1)*STG}\ns_waitcnt vmcnt({6*(NS-2)+npf})\ns_barrier")
            g.RT(1)
            lp.prologue_reads()
        def publish(tag):
            return f"""
            s_cmp_eq_u32 s{sNon}, 0
            s_cbranch_scc1 L_pub_{tag}
            s_getreg_b32 s34, hwreg(HW_REG_XCC_ID, 0, 4)
            s_xor_b32 s34, s34, s{sNon}
            s_and_b32 s35, s2, 7
            s_lshl_b32 s35, s35, 8
            s_and_b32 s36, s2, 0xf8
            s_add_u32 s35, s35, s36
            s_add_u32 s35, s35, {XT_OFF}
            v_mov_b32 v8, s35
            v_mov_b32 v10, s34
            v_mov_b32 v11, s{sNon+1}
            s_mov_b64 exec, 1
            global_store_dwordx2 v8, v[10:11], s[{sWS}:{sWS+1}] sc1
            s_mov_b64 exec, -1
            L_pub_{tag}:
            """
        g.publish=publish
        def hook1(tag):
            tl=""
            if g.o.get("tlb",4)&1:
                so=("s70","s71") if tag=="qk" else (f"s{sGo}",f"s{sGo}")
                vo=(vSt,vSt+4) if tag=="qk" else (vSt,vSt+1)
                tl=f"""
            s_cmp_eq_u32 s{sC}, 1
            s_cbranch_scc0 L_h0_{tag}
            buffer_load_dword v163, v{vo[0]}, s[{sD}:{sD+3}], {so[0]} offen sc1
            buffer_load_dword v163, v{vo[1]}, s[{sD}:{sD+3}], {so[1]} offen sc1
            L_h0_{tag}:
            """
            return tl+f"""
            s_cmp_eq_u32 s{sC}, 2
            s_cbranch_scc0 L_h1_{tag}
            v_mov_b32 v8, 0
            global_load_dwordx2 v[{vN}:{vN+1}], v8, s[{sDbg}:{sDbg+1}] sc1
            L_h1_{tag}:
            s_cmp_eq_u32 s{sC}, 4
            s_cbranch_scc0 L_h2_{tag}
            v_readfirstlane_b32 s{sNon}, v{vN}
            v_readfirstlane_b32 s{sNon+1}, v{vN+1}
            s_cmp_lg_u32 s{sW}, 0
            s_cbranch_scc1 L_h2_{tag}
            """+publish(tag)+f"""
            L_h2_{tag}:
            """
        def xt_load(v):
            return f"""
            s_and_b32 s35, s2, 7
            s_lshl_b32 s35, s35, 8
            s_add_u32 s35, s35, {XT_OFF}
            v_and_b32 v8, 31, v{vLane}
            v_lshl_add_u32 v8, v8, 3, s35
            global_load_dwordx2 v[{v}:{v+1}], v8, s[{sWS}:{sWS+1}] sc1
            """
        g.xt_load=xt_load
        start()
        P=24
        def qk_epi(ct,fl):
            L=[]
            for qp in range(2):
                n=2*ct+qp; sg=(P if ct else 168-32)+8*n; mk=f"s[{sMask+2*n}:{sMask+2*n+1}]"
                b0=ACC[0][ct]+8*qp; b1=ACC[1][ct]+8*qp
                L+=[f"v_cvt_pk_bf16_f32 v{b0}, v{b0}, v{b0+1}", f"v_cvt_pk_bf16_f32 v{b0+1}, v{b0+2}, v{b0+3}",
                    f"v_cvt_pk_bf16_f32 v{b0+4}, v{b0+4}, v{b0+5}", f"v_cvt_pk_bf16_f32 v{b0+5}, v{b0+6}, v{b0+7}",
                    f"v_cvt_pk_bf16_f32 v{b0+6}, v{b1}, v{b1+1}", f"v_cvt_pk_bf16_f32 v{b0+7}, v{b1+2}, v{b1+3}",
                    f"v_cvt_pk_bf16_f32 v{b1+2}, v{b1+4}, v{b1+5}", f"v_cvt_pk_bf16_f32 v{b1+3}, v{b1+6}, v{b1+7}"]
                for k in range(2):
                    L+=[f"v_cndmask_b32 v{b0+2+k}, v{b0+4+k}, v{b0+6+k}, {mk}", f"v_cndmask_b32 v{b1+k}, v{b0+6+k}, v{b0+4+k}, {mk}"]
                L+=[f"buffer_store_dwordx4 {vr(b0,4)}, v{vSt+2*n}, s[{sD}:{sD+3}], s{70+ct} offen{fl}",
                    f"buffer_store_dwordx4 {vr(b1,4)}, v{vSt+2*n+1}, s[{sD}:{sD+3}], s{70+ct} offen{fl}"]
            return L
        def scale(ct):
            return [f"v_pk_mul_f32 {vr(ACC[tt][ct]+j,2)}, {vr(ACC[tt][ct]+j,2)}, s[{72+2*ct}:{73+2*ct}]" for tt in range(2) for j in range(0,16,2)]
        def both(lines,tag):
            out=[]
            for i,l in enumerate(lines):
                if l.startswith("buffer_store"):
                    out.append(f"s_cbranch_scc1 L_{tag}_{i}p\n{l}{st}\ns_branch L_{tag}_{i}d\nL_{tag}_{i}p:\n{l}\nL_{tag}_{i}d:")
                else: out.append(l)
            return out
        def locl():
            sub=Asm(); sub("s_waitcnt vmcnt(0)"); g.local_flag(sub,166); sub("s_mov_b32 s57, s63\ns_cmp_lg_u32 s57, 0")
            return [l.strip() for l in sub.lines]
        lp.emit("qk",False,barpos,hook1("qk"),xt_load(166),fill=g.attn_setup(),mid=lambda:locl()+["s_nop 3"]+scale(0)+both(qk_epi(0,""),"e0"))
        g.RT(2)
        a("s_nop 7\ns_cmp_lg_u32 s57, 0")
        for l in scale(1)+both(qk_epi(1,""),"e1"): a(l)
        a("s_branch L_p1_done")
        a(f"L_p1_v:")
        a(f"""
        s_lshl_b32 s36, s{sTb}, 1
        s_lshr_b32 s37, s{sW}, 2
        s_add_u32 s36, s36, s37
        s_mul_i32 s35, s36, 10240
        s_bfe_u32 s36, s{sW}, 0x10001
        s_mul_i32 s36, s36, 2560
        s_add_u32 s35, s35, s36
        s_lshl_b32 s36, s{sBlk}, 2
        s_add_u32 s36, s36, s61
        s_mul_i32 s36, s36, {8*KV_IMG}
        s_add_u32 s35, s35, s36
        s_add_u32 s{sGo}, s35, 5120
        s_sub_u32 s36, s{sTyp}, 5
        s_lshl_b32 s36, s36, 6
        s_mov_b32 s34, {KV_IMG}
        v_and_b32 v{vT}, 31, v{vLane}
        v_add_u32 v{vT}, s36, v{vT}
        v_lshrrev_b32 v{vT+1}, 5, v{vLane}
        v_mul_u32_u24 v{vT+1}, 320, v{vT+1}
        """)
        for ct in range(2):
            a(f"""
            v_mul_u32_u24 v{vT+2}, 3277, v{vT}
            v_lshrrev_b32 v{vT+2}, 16, v{vT+2}
            v_mul_u32_u24 v{vT+3}, 20, v{vT+2}
            v_sub_u32 v{vT+3}, v{vT}, v{vT+3}
            v_mul_lo_u32 v{vT+2}, v{vT+2}, s34
            v_add_u32 v{vT+4}, 6, v{vT+3}
            v_cmp_gt_u32 vcc, 4, v{vT+3}
            v_subrev_u32 v{vT+5}, 10, v{vT+3}
            v_add_u32 v{vT}, 32, v{vT}
            v_cndmask_b32 v{vT+4}, v{vT+4}, v{vT+3}, vcc
            v_cmp_lt_u32 vcc, 13, v{vT+3}
            v_add_u32 v{vT+2}, v{vT+2}, v{vT+1}
            s_nop 0
            v_cndmask_b32 v{vT+4}, v{vT+4}, v{vT+5}, vcc
            v_lshl_add_u32 v{vSt+ct}, v{vT+4}, 4, v{vT+2}
            v_cmp_lt_u32 vcc, 191, v{vT}
            v_mov_b32 v{vT+4}, 0x7f000000
            s_nop 0
            v_cndmask_b32 v{vSt+ct}, v{vSt+ct}, v{vT+4}, vcc
            """)
        start()
        def v_epi(ct):
            L=[]
            for tt in range(2):
                b=ACC[tt][ct]
                L+=[f"v_cvt_pk_bf16_f32 v{b+j}, v{b+2*j}, v{b+2*j+1}" for j in range(8)]
                L+=[f"buffer_store_dwordx4 {vr(b+4*s,4)}, v{vSt+ct}, s[{sD}:{sD+3}], s{sGo} offen offset:{tt*1280+s*640}" for s in range(2)]
            return L
        lp.emit("vv",True,barpos,hook1("vv"),xt_load(166),fill=g.attn_setup(),mid=lambda:locl()+["s_nop 3"]+both(v_epi(0),"v0"))
        g.RT(2)
        a("s_nop 7\ns_cmp_lg_u32 s57, 0")
        for l in both(v_epi(1),"v1"): a(l)
        a(f"L_p1_done:")
        g.pub1=(sFl,vN)

    def attn(g):
        a=g.a; name="p2"; o=g.o
        unroll=o.get("unroll",3); prio=o.get("prio",(84,84)); npro=4; ld=g.sc("ld2"); st=g.sc("st2")
        vLane=1; vT=8
        Q1=[16,20]; Q2e=[24,26]; Q2o=[28,30]
        K1=[32,36,40,44]; K2=48
        SB=[52+16*i for i in range(4)]
        sKV=8; sQ=12; sO=16; sW=sWave; sG=21; sVM=22; sDma=39
        vmask=0
        for i in range(32):
            if isinstance(row_dim(i),int): vmask|=1<<i
        a(f"""
        s_and_b32 s26, s2, 7
        s_lshr_b32 s27, s2, 3
        s_lshr_b32 s28, s26, 2
        s_and_b32 s29, s26, 3
        s_lshl_b32 s29, s29, 3
        s_and_b32 s30, s27, 7
        s_add_u32 s29, s29, s30
        s_lshr_b32 s30, s27, 3
        s_lshl_b32 s31, s28, 5
        s_add_u32 s31, s31, s29
        """)
        a.c("s28=blk s29=head s30=qb s31=p")
        a(f"""
        s_mul_i32 s32, s31, {KV_IMG}
        s_mul_i32 s33, s31, {Q_IMG}
        s_add_u32 s33, s33, {Q_OFF}
        s_mul_i32 s34, s28, {O_BLK}
        s_add_u32 s34, s34, {O_OFF}
        s_mov_b32 s{sKV+2}, {KV_IMG}
        s_mov_b32 s{sKV+3}, 0x20000
        s_mov_b32 s{sQ+2}, {Q_IMG}
        s_mov_b32 s{sQ+3}, 0x20000
        s_mov_b32 s{sO+2}, {O_BLK}
        s_mov_b32 s{sO+3}, 0x20000
        s_add_u32 s{sKV}, s{sWS}, s32
        s_addc_u32 s{sKV+1}, s{sWS+1}, 0
        s_add_u32 s{sQ}, s{sWS}, s33
        s_addc_u32 s{sQ+1}, s{sWS+1}, 0
        s_add_u32 s{sO}, s{sWS}, s34
        s_addc_u32 s{sO+1}, s{sWS+1}, 0
        s_mov_b32 s{sVM}, {vmask:#x}
        s_mov_b32 s{sVM+1}, {vmask:#x}
        s_lshl_b32 s35, s30, 2
        s_lshr_b32 s36, s{sW}, 1
        s_add_u32 s35, s35, s36
        s_mul_i32 s35, s35, 5120
        s_and_b32 s36, s{sW}, 1
        s_lshl_b32 s37, s36, 11
        s_add_u32 s37, s37, s35
        s_lshl_b32 s38, s36, 9
        s_add_u32 s38, s38, s35
        s_add_u32 s38, s38, 4096
        s_lshl_b32 s{sDma}, s{sW}, 10
        s_mov_b32 m0, s{sDma}
        """)
        a.c("publish: every wave's stores are done, then one lane writes the tag of this launch")
        a(f"""
        s_cmp_lg_u32 s{sW}, {g.o.get('pw1',7)}
        s_cbranch_scc1 L_p1_nq
        {"global_load_dwordx2 v[164:165], v245, s[88:89] sc1" if g.o.get("spec1",0) else ""}
        L_p1_nq:
        s_waitcnt vmcnt(0)
        """)
        g.RT(3)
        a("s_barrier")
        g.get_nonce(a,"a",g.pub1[1])
        a(f"s_cmp_lg_u32 s{sW}, 0\ns_cbranch_scc1 L_p1_ns")
        g.signal(a,g.pub1[0],"1",57)
        a("L_p1_ns:")
        a(f"s_cmp_lg_u32 s{sW}, {g.o.get('pw1',7)}\ns_cbranch_scc1 L_p2_np")
        g.poll(a,vFl,"1",164)
        a("L_p2_np:\ns_barrier")
        g.RT(4)
        def dma():
            return [f"buffer_load_dwordx4 v{vKb}, s[{sKV}:{sKV+3}], s{sDma} offen{ld} lds",
                    f"s_add_u32 s{sDma}, s{sDma}, 8192", f"s_mov_b32 m0, s{sDma}"]
        for l in dma(): a(l)
        a(f"""
        buffer_load_dwordx4 {vr(Q1[0],4)}, v{vKb}, s[{sQ}:{sQ+3}], s37 offen{g.sc("ldq")}
        buffer_load_dwordx4 {vr(12,4)}, v{vQ2}, s[{sQ}:{sQ+3}], s38 offen{g.sc("ldq")}
        """)
        op=0; late=o.get("late3",1)
        def rest():
            a(f"buffer_load_dwordx4 {vr(Q1[1],4)}, v{vKb}, s[{sQ}:{sQ+3}], s37 offen offset:1024{g.sc('ldq')}")
            for m in range(1,npro):
                for l in dma(): a(l)
                a("s_nop 0")
        if not late: rest()
        a(f"v_cmp_gt_u32 vcc, 32, v{vLane}\ns_waitcnt vmcnt({0 if late else npro})\ns_barrier")
        a(f"ds_read_b128 {vr(K1[0],4)}, v{vKb}")
        a(f"ds_read_b128 {vr(K2,4)}, v{vKb} offset:4096")
        for t in range(1,4): a(f"ds_read_b128 {vr(K1[t],4)}, v{vKb} offset:{t*1024}")
        a(f"s_mov_b64 exec, s[{sVM}:{sVM+1}]")
        for t in range(3 if op else 2):
            for s in range(2): a(f"ds_read_b128 {vr(V[t][s],4)}, v{vVb} offset:{t*1280+s*640}")
        a(f"s_mov_b64 exec, -1\ns_mov_b32 s{sG}, 0")
        if late: rest()
        a.c("Q2 variants: e = extras in lanes 0-31 only, o = in lanes 32-63 only")
        for q in range(2):
            for j in range(2):
                a(f"v_cndmask_b32 v{Q2e[q]+j}, 0, v{12+2*q+j}, vcc")
                a(f"v_cndmask_b32_e64 v{Q2o[q]+j}, v{12+2*q+j}, 0, vcc")
        a(f"s_waitcnt lgkmcnt({9 if op else 7})")
        def qk1(n):
            kt=(n>>1)&3; qt=n&1
            return f"v_mfma_f32_32x32x16_bf16 {vr(SB[n%4],16)}, {vr(K1[kt],4)}, {vr(Q1[qt],4)}, 0"
        def qk2(n):
            kt=(n>>1)&3; qt=n&1
            q2=(Q2e if kt<2 else Q2o)[qt]
            return f"v_mfma_f32_32x32x8_bf16 {vr(SB[n%4],16)}, {vr(K2+2*(kt&1),2)}, {vr(q2,2)}, {vr(SB[n%4],16)}"
        def pv(n,s):
            kt=(n>>1)&3; qt=n&1
            return f"v_smfmac_f32_32x32x32_bf16 {vr(O[qt],16)}, {vr(V[kt][s],4)}, {vr(SB[n%4]+8*s,8)}, v{vIdx}"
        a(qk1(0)); a(qk2(0))
        a(f"s_waitcnt vmcnt({npro-1})\ns_nop 7\ns_nop 2")
        g.RT(5)
        def group_body(u, last, dmas, first=False, dmaf=None):
            body=[]; held=[]; dmaf=dmaf or dma
            def ex(n,j0):
                body.append(("q",4*n+j0//4))
                for j in range(j0,j0+4): body.append(("i",f"v_exp_f32 v{SB[n%4]+j}, v{SB[n%4]+j}"))
            nx=(u+1)*10240; cu=u*10240
            for n in range(8):
                m=n+1; kt=(m>>1)&3
                A=[];B=[];C=[]
                if m&1 and m<8: A.append(("read",f"K1{kt}",f"ds_read_b128 {vr(K1[kt],4)}, v{vKn} offset:{nx+kt*1024}",True))
                if m==5: B.append(("read","K20",f"ds_read_b64 {vr(K2,2)}, v{vKn} offset:{nx+4096}",True))
                if m==7: B.append(("read","K21",f"ds_read_b64 {vr(K2+2,2)}, v{vKn} offset:{nx+4096+8}",True))
                for k in range(dmas[n]):
                    for l in dmaf(): B.append(("i",l))
                    if k+1<dmas[n]: B.append(("i","s_nop 0"))
                pn=(n-1)%8; pk=pn>>1
                if pn&1 and not (last and pk!=3):
                    off=cu if pk==3 else nx
                    C.append(("i",f"s_mov_b64 exec, s[{sVM}:{sVM+1}]"))
                    for s in range(2): C.append(("read",f"V{pk}{s}",f"ds_read_b128 {vr(V[pk][s],4)}, v{vVn} offset:{off+pk*1280+s*640}",pk!=3))
                    C.append(("i","s_mov_b64 exec, -1"))
                if first and n<SYNC:
                    held+=[x for x in A if x[0]=="read"]; A=[]
                    if C and pk==3 and op: pass
                    elif C and pk==3:
                        held+=[C[0]]+[("read",f"V2{s_}",f"ds_read_b128 {vr(V[2][s_],4)}, v{vVn} offset:{2*1280+s_*640}",False) for s_ in range(2)]+C[1:]; C=[]
                    elif C: held+=C; C=[]
                if first and n==SYNC:
                    body.append(("i",f"s_waitcnt vmcnt({sum(dmas[:SYNC])})")); body.append(("i","s_barrier"))
                    body+=held
                body.append(("slot",n))
                if not (last and m==8):
                    body.append(("use",f"K1{kt}")); body.append(("i",qk1(m)))
                body+=A
                ex(n,0)
                if not (last and m==8):
                    body.append(("use",f"K2{kt&1}")); body.append(("i",qk2(m)))
                body+=B
                ex(n,4)
                if not (first and n==0): body.append(("use",f"V{pk}0")); body.append(("i",pv(pn,0)))
                ex(n,8)
                if not (first and n==0): body.append(("use",f"V{pk}1")); body.append(("i",pv(pn,1)))
                body+=C
                ex(n,12)
            return body
        SYNC=o.get('sync',4)
        gb=group_body(0,False,[0]*8)
        def need(nm,at):
            L=len(gb); cnt=0; i=at-1
            while True:
                b=gb[i%L]
                if b[0]=="read":
                    if b[1]==nm: return cnt
                    cnt+=1
                i-=1
        slotpos=[i for i,b in enumerate(gb) if b[0]=="slot"]+[len(gb)]
        waits={}
        for k in range(8):
            w=99
            for i in range(slotpos[k],slotpos[k+1]):
                if gb[i][0]=="use":
                    for j in range(slotpos[k],i): assert not (gb[j][0]=="read" and gb[j][1]==gb[i][1])
                    w=min(w,need(gb[i][1],slotpos[k]))
            waits[k]=w
        def exact_waits(seq, queue):
            q=list(queue); res={}; pos=[i for i,b in enumerate(seq) if b[0]=="slot"]+[len(seq)]
            for i,b in enumerate(seq):
                if b[0]=="read": q.append(b[1])
                if b[0]=="slot":
                    nxt=min(p for p in pos if p>i); w=99
                    for j in range(i,nxt):
                        if seq[j][0]=="use":
                            for jj in range(i,j): assert not (seq[jj][0]=="read" and seq[jj][1]==seq[j][1])
                            if seq[j][1] in q:
                                last_i=len(q)-1-q[::-1].index(seq[j][1]); w=min(w,len(q)-1-last_i)
                    if w<99:
                        assert w<=15
                        res[i]=w; q=q[len(q)-w:] if w else []
            return res
        def emit(body,last=False,qbase=0,pr=None,ew=None):
            if last: body=[b for b in body if not (b[0]=="read" and b[3])]
            for i,b in enumerate(body):
                if b[0]=="slot":
                    w=waits[b[1]] if ew is None else ew.get(i)
                    if last: w={0:waits[0],1:0,7:0}.get(b[1])
                    if w is not None: a(f"s_waitcnt lgkmcnt({w})")
                elif b[0]=="q":
                    if pr is not None:
                        q=qbase+b[1]
                        if q%32==0 and (q==0 or ew is not None): a("s_setprio 1")
                        if q==pr: a("s_setprio 0")
                elif b[0]=="i": a(b[1])
                elif b[0]=="read": a(b[2])
        d=[2]*8
        pr=prio[0]; p1=max(pr-32*(unroll-1),1)
        seq=group_body(0,False,d,first=True)+group_body(1,False,[0]*8)
        emit(seq,pr=p1,ew=exact_waits(seq,["K11","K12","K13","V00","V01","V10","V11"]+(["V20","V21"] if op else [])))
        a(f"""
        v_add_u32 v{vKn}, {2*10240}, v{vKn}
        v_add_u32 v{vVn}, {2*10240}, v{vVn}
        s_waitcnt vmcnt(0)
        s_barrier
        """)
        nloop=13//unroll; tail=13-nloop*unroll
        a(".p2align 5")
        a(f"L_p2_loop:")
        for u in range(unroll): emit(group_body(u,False,[0]*8),qbase=32*u,pr=pr)
        a(f"""
        s_add_u32 s{sG}, s{sG}, 1
        v_add_u32 v{vKn}, {unroll*10240}, v{vKn}
        v_add_u32 v{vVn}, {unroll*10240}, v{vVn}
        s_cmp_lg_u32 s{sG}, {nloop}
        s_cbranch_scc1 L_p2_loop
        """)
        assert tail==1
        a.c("key groups 0..13 are consumed by every wave: stage the Wo rows of the projection tile over groups 0..11")
        a(f"""
        s_lshr_b32 s40, s2, 3
        s_and_b32 s40, s40, 7
        s_mul_i32 s40, s40, 160
        s_mov_b32 s{sQ}, s76
        s_mov_b32 s{sQ+1}, s77
        s_mov_b32 s{sQ+2}, {640*1280}
        s_mul_i32 s46, s{sW}, {40*1280}
        s_add_u32 s46, s46, s40
        s_add_u32 s47, s46, {320*1280}
        s_mul_i32 s48, s{sW}, {160*1280}
        s_add_u32 s48, s48, s40
        s_mul_i32 s{sDma}, s{sW}, 5120
        s_mov_b32 m0, s{sDma}
        s_barrier
        """)
        if o.get("tlb",4)&2:
            a.c("warm the address translation of the O image and of the output (values unused)")
            a(f"""
            v_min_u32 v8, 4, v{vLane}
            v_mul_u32_u24 v8, 0x13ff00, v8
            v_lshrrev_b32 v9, 1, v8
            global_load_dword v10, v8, s[78:79] sc1
            buffer_load_dword v11, v9, s[{sO}:{sO+3}], 0 offen sc1
            """)
        cnt=[0]
        def dmaw():
            r,u=divmod(cnt[0],5); cnt[0]+=1
            r2_,u2=divmod(cnt[0],5)
            return [f"buffer_load_dwordx4 v{W0+5*(r==2)+u}, s[{sQ}:{sQ+3}], s{46+r} offen lds",
                    f"s_add_u32 m0, s{sDma}, {r2_*40960+u2*1024}"]
        emit(group_body(0,False,[2,2,2,2,2,2,2,1],dmaf=dmaw),pr=p1)
        emit(group_body(tail,True,[0]*8),last=True,pr=p1)
        a(pv(7,0)); a(pv(7,1))
        g.RT(6)
        a.c("O image: [blk][q tile][40 fragments of 1 KiB]: fragment head = dims 10h..10h+7, fragment 32+(head>>2) dword head&3 = dims 10h+8,9")
        a(f"""
        s_setprio 0
        s_lshl_b32 s35, s30, 4
        s_lshl_b32 s36, s{sW}, 1
        s_add_u32 s35, s35, s36
        s_mul_i32 s35, s35, 40960
        s_lshr_b32 s36, s29, 2
        s_lshl_b32 s36, s36, 10
        s_and_b32 s37, s29, 3
        s_lshl_b32 s37, s37, 2
        s_add_u32 s36, s36, s37
        s_add_u32 s36, s36, 32768
        s_add_u32 s33, s35, s36
        s_lshl_b32 s36, s29, 10
        s_add_u32 s35, s35, s36
        """)
        a.c("safety check of the unshifted softmax: 2^-16 <= l <= 2^60 and finite accumulators, else redo with the true max")
        a(f"""
        s_mov_b32 s36, 0x37800000
        s_mov_b32 s37, 0x5d800000
        s_mov_b32 s38, 0x7f800000
        s_mov_b64 s[46:47], -1
        """)
        for q in range(2):
            a(f"v_cmp_le_f32 vcc, s36, v{O[q]+10}\ns_and_b64 s[46:47], s[46:47], vcc")
            a(f"v_cmp_ge_f32 vcc, s37, v{O[q]+10}\ns_and_b64 s[46:47], s[46:47], vcc")
            a(f"v_add_f32_e64 v{vT+2}, abs(v{O[q]}), abs(v{O[q]+1})")
            for j in range(2,10): a(f"v_add_f32_e64 v{vT+2}, v{vT+2}, abs(v{O[q]+j})")
            a(f"v_cmp_gt_f32 vcc, s38, v{vT+2}\ns_and_b64 s[46:47], s[46:47], vcc")
        a(f"""
        s_cmp_eq_u64 s[46:47], -1
        s_cbranch_scc0 L_p2_slow
        L_p2_fin:
        """)
        for q in range(2):
            a(f"v_rcp_f32 v{vT+2}, v{O[q]+10}\ns_nop 0")
            for j in range(10): a(f"v_mul_f32 v{O[q]+j}, v{O[q]+j}, v{vT+2}")
            for j in range(5): a(f"v_cvt_pk_bf16_f32 v{O[q]+j}, v{O[q]+2*j}, v{O[q]+2*j+1}")
        a("s_add_u32 s36, s35, 40960\ns_add_u32 s37, s33, 40960\ns_mov_b32 s63, 0")
        for q in range(2):
            a(f"buffer_store_dwordx4 {vr(O[q],4)}, v{vKb}, s[{sO}:{sO+3}], s{35+q} offen{st}")
            a(f"buffer_store_dword v{O[q]+4}, v{vKb}, s[{sO}:{sO+3}], s{33+4*q} offen{st}")
        a.c("flag of this tile: F2 + (blk*4+qb)*256 + head*8")
        a(f"""
        s_lshl_b32 s40, s28, 2
        s_add_u32 s40, s40, s30
        s_lshl_b32 s40, s40, 8
        s_lshl_b32 s41, s29, 3
        s_add_u32 s40, s40, s41
        s_add_u32 s40, s40, {F2_OFF}
        s_and_b32 s41, s2, 7
        s_lshl_b32 s41, s41, 8
        s_add_u32 s41, s41, {F2_OFF}
        v_and_b32 v22, 31, v{vLane}
        v_lshl_add_u32 v22, v22, 3, s41
        s_cmp_lg_u32 s{sW}, {g.o.get('pw2',7)}
        s_cbranch_scc1 L_p2_nq
        {"global_load_dwordx2 v[24:25], v22, s[88:89] sc1" if g.o.get("spec2",0) else ""}
        L_p2_nq:
        s_waitcnt vmcnt(0)
        """)
        g.RT(7)
        a("s_barrier")
        t=g.tail; M=[SB[2],SB[3]]
        t(f"L_p2_slow:")
        t(f"v_mov_b32 v{vT+4}, 0xff800000\nv_mov_b32 v{vT+5}, 0xff800000")
        for ps in range(2):
            t(f"""
            v_mov_b32 v{vKn}, v{vKb}
            v_mov_b32 v{vVn}, v{vVb}
            s_mov_b32 s{sG}, 0
            L_p2_slow{ps}:
            """)
            for tt in range(4): t(f"buffer_load_dwordx4 {vr(K1[tt],4)}, v{vKn}, s[{sKV}:{sKV+3}], 0 offen offset:{tt*1024}{ld}")
            t(f"s_movk_i32 s40, 0x1000\nbuffer_load_dwordx4 {vr(K2,4)}, v{vKn}, s[{sKV}:{sKV+3}], s40 offen{ld}")
            if ps==1:
                t(f"s_mov_b64 exec, s[{sVM}:{sVM+1}]")
                for tt in range(4):
                    for s in range(2):
                        off=tt*1280+s*640
                        t(f"buffer_load_dwordx4 {vr(V[tt][s],4)}, v{vVn}, s[{sKV}:{sKV+3}], {'0' if off<4096 else 's40'} offen offset:{off%4096}{ld}")
                t("s_mov_b64 exec, -1")
            t("s_waitcnt vmcnt(0)")
            for n in range(8):
                kt=n>>1; qt=n&1; sb=SB[0]
                q2=(Q2e if kt<2 else Q2o)[qt]
                c="0" if ps==0 else vr(M[qt],16)
                t(f"v_mfma_f32_32x32x16_bf16 {vr(sb,16)}, {vr(K1[kt],4)}, {vr(Q1[qt],4)}, {c}")
                t(f"v_mfma_f32_32x32x8_bf16 {vr(sb,16)}, {vr(K2+2*(kt&1),2)}, {vr(q2,2)}, {vr(sb,16)}")
                t("s_nop 15")
                if ps==0:
                    for j in range(0,16,2): t(f"v_max3_f32 v{vT+4+qt}, v{vT+4+qt}, v{sb+j}, v{sb+j+1}")
                else:
                    for j in range(16): t(f"v_exp_f32 v{sb+j}, v{sb+j}")
                    t("s_nop 1")
                    for s in range(2): t(f"v_smfmac_f32_32x32x32_bf16 {vr(O[qt],16)}, {vr(V[kt][s],4)}, {vr(sb+8*s,8)}, v{vIdx}")
            t(f"""
            v_add_u32 v{vKn}, 10240, v{vKn}
            v_add_u32 v{vVn}, 10240, v{vVn}
            s_add_u32 s{sG}, s{sG}, 1
            s_cmp_lg_u32 s{sG}, 16
            s_cbranch_scc1 L_p2_slow{ps}
            """)
            if ps==0:
                t.c("combine the two half-waves (same query, other 16 keys), negate, broadcast; clear O")
                for q in range(2):
                    t(f"""
                    v_mov_b32 v{vT+6}, v{vT+4+q}
                    v_mov_b32 v{vT+7}, v{vT+4+q}
                    s_nop 1
                    v_permlane32_swap_b32 v{vT+6}, v{vT+7}
                    s_nop 1
                    v_max_f32 v{vT+6}, v{vT+6}, v{vT+7}
                    v_sub_f32 v{vT+6}, 0, v{vT+6}
                    """)
                    for j in range(16): t(f"v_mov_b32 v{M[q]+j}, v{vT+6}")
                    for j in range(16): t(f"v_mov_b32 v{O[q]+j}, 0")
        t(f"s_nop 15\ns_branch L_p2_fin")

    def proj(g):
        a=g.a; ld=g.sc("ld3")
        vLane=1; vXd=2; vWa=3; vSt=4; vRd=6; vT=8
        WF=[[28+4*c for c in range(5)],[48+4*c for c in range(5)]]
        ACC=[68+4*c for c in range(5)]
        X=[88+4*f for f in range(20)]
        sX=8; sD=16; sW=sWave; sBlk=28; sTb=29; sCb=30; sXo=25; sWo=26
        a(f"""
        s_cmp_lg_u32 s{sW}, 0
        s_cbranch_scc1 L_p3_go
        """)
        g.signal(a,40,"2",63)
        a(f"""
        L_p3_go:
        s_and_b32 s34, s2, 7
        s_lshr_b32 s33, s2, 3
        s_lshr_b32 s{sBlk}, s34, 2
        s_and_b32 s34, s34, 3
        s_and_b32 s{sCb}, s33, 7
        s_lshr_b32 s35, s33, 3
        s_lshl_b32 s{sTb}, s34, 2
        s_add_u32 s{sTb}, s{sTb}, s35
        s_lshr_b32 s20, s{sW}, 1
        s_and_b32 s21, s{sW}, 1
        s_lshl_b32 s{sXo}, s{sTb}, 2
        s_add_u32 s{sXo}, s{sXo}, s20
        s_mul_i32 s{sXo}, s{sXo}, 40960
        s_lshl_b32 s35, s21, 8
        s_add_u32 s{sXo}, s{sXo}, s35
        s_mul_i32 s{sWo}, s{sCb}, 160
        s_mov_b32 s{sX+2}, {O_BLK}
        s_mov_b32 s{sX+3}, 0x20000
        s_mul_i32 s35, s{sBlk}, {O_BLK}
        s_add_u32 s35, s35, {O_OFF}
        s_add_u32 s{sX}, s{sWS}, s35
        s_addc_u32 s{sX+1}, s{sWS+1}, 0
        s_cmp_ge_u32 s{sCb}, 5
        s_cselect_b32 s35, 5, 0
        s_sub_u32 s42, s{sCb}, s35
        """)
        if not g.o.get("rot3",False): a("s_mov_b32 s42, 0")
        a.c("transposing read address: (16(g>>1) + 4(g&1) + r)*160 + c4*8 + k half*10240")
        a(f"""
        v_lshrrev_b32 v{vT}, 4, v{vLane}
        v_lshrrev_b32 v{vT+2}, 1, v{vT}
        v_lshlrev_b32 v{vT+2}, 4, v{vT+2}
        v_and_b32 v{vT+3}, 1, v{vT}
        v_lshl_add_u32 v{vT+2}, v{vT+3}, 2, v{vT+2}
        v_bfe_u32 v{vT+3}, v{vLane}, 2, 2
        v_add_u32 v{vT+2}, v{vT+2}, v{vT+3}
        v_mul_u32_u24 v{vT+2}, 160, v{vT+2}
        v_and_b32 v{vT+3}, 3, v{vLane}
        v_lshl_add_u32 v{vWa}, v{vT+3}, 3, v{vT+2}
        """)
        a.c("round R handles k steps 4r..4r+3, r = (R + column block) mod 5: s[44+R] = X offset, v[16+R] = W address")
        for R in range(5):
            a(f"""
            s_lshl_b32 s{44+R}, s42, 13
            s_add_u32 s{44+R}, s{44+R}, s{sXo}
            s_add_u32 s{64+R}, s{44+R}, 4096
            s_mul_i32 s35, s42, 20480
            v_add_u32 v{16+R}, s35, v{vWa}
            s_add_u32 s42, s42, 1
            s_cmp_eq_u32 s42, 5
            s_cselect_b32 s42, 0, s42
            """)
        a(f"""
        v_and_b32 v{vT+1}, 15, v{vLane}
        v_lshlrev_b32 v{vXd}, 9, v{vT}
        v_lshl_add_u32 v{vXd}, v{vT+1}, 4, v{vXd}
        v_and_b32 v{vT+2}, 3, v{vLane}
        v_bfe_u32 v{vT+3}, v{vLane}, 2, 1
        v_lshl_or_b32 v{vT+2}, v{vT+3}, 3, v{vT+2}
        v_bfe_u32 v{vT+3}, v{vLane}, 3, 1
        v_lshl_or_b32 v{vT+2}, v{vT+3}, 2, v{vT+2}
        v_mul_u32_u24 v{vT+2}, 2560, v{vT+2}
        v_lshl_add_u32 v{vSt+1}, v{vT}, 3, v{vT+2}
        v_and_b32 v{vT+3}, 1, v{vT}
        v_lshl_add_u32 v{vT+2}, v{vT+3}, 5, v{vT+2}
        v_lshrrev_b32 v{vT+3}, 1, v{vT}
        v_lshl_add_u32 v{vSt}, v{vT+3}, 4, v{vT+2}
        s_mov_b32 s{sD+2}, {2048*2560}
        s_mov_b32 s{sD+3}, 0x20000
        s_lshl_b32 s40, s{sTb}, 7
        s_lshl_b32 s41, s20, 5
        s_add_u32 s40, s40, s41
        s_lshl_b32 s41, s21, 4
        s_add_u32 s40, s40, s41
        s_mul_i32 s40, s40, 2560
        s_mul_i32 s41, s{sBlk}, 1280
        s_add_u32 s40, s40, s41
        s_add_u32 s40, s40, s{sWo}
        s_mov_b32 s{sD}, s78
        s_mov_b32 s{sD+1}, s79
        """)
        def wreads(f,buf):
            return ["\n".join(f"ds_read_b64_tr_b16 {vr(WF[buf][c]+2*sec,2)}, v{16+f//4} offset:{(f%4)*5120+sec*1280+c*32}" for sec in range(2)) for c in range(5)]
        for x in wreads(0,0): a(x)
        a(f"s_cmp_lg_u32 s{sW}, {g.o.get('pw2',7)}\ns_cbranch_scc1 L_p3_np")
        g.poll(a,22,"2",24)
        a("L_p3_np:\ns_barrier")
        g.RT(8)
        UP=g.o.get("up3",20)
        def xload(f): return f"buffer_load_dwordx4 {vr(X[f],4)}, v{vXd}, s[{sX}:{sX+3}], s{(44 if (f&3)<2 else 64)+f//4} offen offset:{(f&1)*2048}{ld}"
        for f in range(UP): a(xload(f))
        issued=UP
        for f in range(20):
            buf=f&1
            rd=wreads(f+1,buf^1) if f<19 else []
            a(f"s_waitcnt vmcnt({issued-f-1})")
            if g.stamp and g.o.get("st3")==f: a("s_memrealtime s[96:97]\ns_waitcnt lgkmcnt(0)\nv_writelane_b32 v255, s96, 1")
            for c in range(5):
                if c in (0,3): a(f"s_waitcnt lgkmcnt({(4 if c==0 else 6) if rd else (4 if c==0 else 0)})")
                d=vr(ACC[c],4)
                a(f"v_mfma_f32_16x16x32_bf16 {d}, {vr(WF[buf][c],4)}, {vr(X[f],4)}, {'0' if f==0 else d}")
                if rd: a(rd[c])
                if c in (1,3) and issued<20:
                    a(xload(issued)); issued+=1
        g.RT(9)
        a("s_nop 7")
        for p in range(2):
            A0=ACC[2*p]; A1=ACC[2*p+1]
            a(f"v_cvt_pk_bf16_f32 v{A0}, v{A0}, v{A0+1}\nv_cvt_pk_bf16_f32 v{A0+1}, v{A0+2}, v{A0+3}")
            a(f"v_cvt_pk_bf16_f32 v{A0+2}, v{A1}, v{A1+1}\nv_cvt_pk_bf16_f32 v{A0+3}, v{A1+2}, v{A1+3}")
            a("s_nop 1")
            a(f"v_permlane16_swap_b32 v{A0}, v{A0+2}\nv_permlane16_swap_b32 v{A0+1}, v{A0+3}")
            a(f"buffer_store_dwordx4 {vr(A0,4)}, v{vSt}, s[{sD}:{sD+3}], s40 offen offset:{p*64}")
        A4=ACC[4]
        a(f"v_cvt_pk_bf16_f32 v{A4}, v{A4}, v{A4+1}\nv_cvt_pk_bf16_f32 v{A4+1}, v{A4+2}, v{A4+3}")
        a(f"buffer_store_dwordx2 {vr(A4,2)}, v{vSt+1}, s[{sD}:{sD+3}], s40 offen offset:128")

    def build(g):
        a=g.a
        kernel_header(a,NAME)
        g.qkv(); g.attn(); g.proj()
        if g.stamp:
            a("s_waitcnt vmcnt(0)")
            g.RT(10)
        a("L_fin:")
        if g.stamp:
            a(f"""
            s_lshl_b32 s52, s2, 3
            s_add_u32 s52, s52, s{sWave}
            s_lshl_b32 s52, s52, 6
            s_add_u32 s52, s52, {64<<20}
            v_lshl_add_u32 v16, v1, 2, s52
            s_mov_b64 exec, 0xffff
            global_store_dword v16, v255, s[{sWS}:{sWS+1}]
            """)
        a("L_end:\ns_endpgm")
        t=g.tail
        t(".p2align 5\nL_tab:")
        for hf,(c,row) in enumerate(tables2.table()):
            for runs,dest,sec in row: t(".byte "+", ".join(str(x) for x in [r+16*(hf&1) for r in runs]+dest))
        t(".p2align 2")
        return a.text()+t.text(), kernel_desc(NAME, 256, 100)

def write(path, stamp=False, **opt):
    HEAD=open("concat_heads__mha_block__mha_block__prompt.s.ref").read().split("; Override launch")[0]
    t,d=Gen(stamp,opt).build()
    if opt.get("align") is not None:
        import align
        t,nw,nn=align.align8(t,"L_p2_np","L_p2_fin",opt["align"])
        print(path,"widened",nw,"nops",nn)
    s=HEAD+"; @launch grid=(256,1,1) block=(512,1,1) lds=163840\n"+'.amdgcn_target "amdgcn-amd-amdhsa--gfx950"\n.text\n'+t+d
    open(path,"w").write(s)

if __name__=="__main__":
    write("k4.s",sleep=1); write("k4_st.s",stamp=True,sleep=1)
```

```python
from asmlib import *
import tables2
from gemm import Loop, w_frag_addr, f32bits

F1_OFF=(WS_USED+4095)//4096*4096
XT_OFF=F1_OFF+2048
F2_OFF=XT_OFF+2048
NAME="concat_heads__mha_block__mha_block__prompt_kernel"
sWS=88; sNon=90; sDbg=92; sWave=94
SPIN=1<<22

class Gen:
    def __init__(g, stamp=False, opt=None):
        g.a=Asm(); g.tail=Asm(); g.stamp=stamp; g.o=dict(opt or {}); g.nst=0
    def RT(g, i):
        if g.stamp:
            g.a(f"s_memrealtime s[96:97]\ns_waitcnt lgkmcnt(0)\nv_mov_b32 v{240+i}, s96")
    def sc(g, key):
        return g.o.get(key," sc1")

    def signal(g, a, off_s, tag, loc):
        a(f"""
        v_mov_b32 v8, s{off_s}
        v_mov_b32 v10, s{sNon}
        v_mov_b32 v11, s{sNon+1}
        s_mov_b64 exec, 1
        s_cmp_lg_u32 s{loc}, 0
        s_cbranch_scc1 L_sig_{tag}
        global_store_dwordx2 v8, v[10:11], s[{sWS}:{sWS+1}] sc1
        s_branch L_sigd_{tag}
        L_sig_{tag}:
        global_store_dwordx2 v8, v[10:11], s[{sWS}:{sWS+1}]
        L_sigd_{tag}:
        s_mov_b64 exec, -1
        """)
    def poll(g, a, voff, tag, vd):
        a(f"""
        s_mov_b32 s95, {SPIN}
        {"s_branch L_pollc_"+tag if g.o.get("spec"+tag,0) else ""}
        L_poll_{tag}:
        global_load_dwordx2 v[{vd}:{vd+1}], v{voff}, s[{sWS}:{sWS+1}] sc1
        s_waitcnt vmcnt(0)
        L_pollc_{tag}:
        v_cmp_eq_u64 vcc, s[{sNon}:{sNon+1}], v[{vd}:{vd+1}]
        s_sub_u32 s95, s95, 1
        s_cmp_eq_u64 vcc, -1
        s_cbranch_scc1 L_polled_{tag}
        {"s_sleep %d"%g.o["sleep"] if g.o.get("sleep") else ""}
        s_cmp_lg_u32 s95, 0
        s_cbranch_scc1 L_poll_{tag}
        L_polled_{tag}:
        """)
    def get_nonce(g, a, tag, vN):
        a(f"""
        s_mov_b32 s95, {SPIN}
        L_non_{tag}:
        v_readfirstlane_b32 s{sNon}, v{vN}
        v_readfirstlane_b32 s{sNon+1}, v{vN+1}
        s_sub_u32 s95, s95, 1
        s_nop 2
        s_cmp_lg_u32 s{sNon}, 0
        s_cbranch_scc1 L_nond_{tag}
        s_cmp_eq_u32 s95, 0
        s_cbranch_scc1 L_nond_{tag}
        v_mov_b32 v8, 0
        s_sleep 1
        global_load_dwordx2 v[{vN}:{vN+1}], v8, s[{sDbg}:{sDbg+1}] sc1
        s_waitcnt vmcnt(0)
        s_branch L_non_{tag}
        L_nond_{tag}:
        """)

    def local_flag(g, a, vX):
        if g.o.get("local","check")=="force": a("s_mov_b32 s63, 1"); return
        if g.o.get("local","check")=="off": a("s_mov_b32 s63, 0"); return
        a(f"""
        s_getreg_b32 s63, hwreg(HW_REG_XCC_ID, 0, 4)
        s_xor_b32 s42, s{sNon}, s63
        s_mov_b32 s43, s{sNon+1}
        v_cmp_eq_u64 vcc, s[42:43], v[{vX}:{vX+1}]
        s_cmp_lg_u32 s{sNon}, 0
        s_cselect_b32 s63, 1, 0
        s_cmp_eq_u64 vcc, -1
        s_cselect_b32 s63, s63, 0
        """)

    def flag1_addr(g, a):
        a(f"""
        s_and_b32 s40, s2, 7
        s_lshl_b32 s40, s40, 8
        s_add_u32 s40, s40, {F1_OFF}
        v_and_b32 v162, 31, v1
        v_lshl_add_u32 v162, v162, 3, s40
        """)

    def qkv(g):
        a=g.a; name="p1"; st=g.sc("st1")
        NS=3; STG=49152; barpos=g.o.get("barpos",1)
        vLane=1; vXa=[2,3,4,5]; vWa=[6,7]; vT=8
        vXd=[16,17,18,19]; vWd=[20,21]; vN=160
        XF=[[24+16*b,28+16*b] for b in range(4)]; WF=[[32+16*b,36+16*b] for b in range(4)]
        ACC=[[88,104],[120,136]]; vSt=152
        sX=8; sWm=12; sD=16; sW=sWave; sC=21; sStg=84
        sXo=25; sWo=26; sKc=27; sTab=40; sBlk=28; sTb=29; sCb=30; sTyp=31; sM=22; sMask=48; sGo=56; sScale=58; sFl=62
        r1,r2,r3=g.o.get("rot",(1,0,5)); lx=g.o.get("ldx",""); lw=g.o.get("ldw","")
        assert r3*3//2+7*r1+3*r2<69
        a(f"""
        s_cmp_ge_u32 s2, 256
        s_cbranch_scc1 L_end
        s_bfe_u32 s{sBlk}, s2, 0x10002
        s_mul_i32 s35, s{sBlk}, 24
        s_load_dwordx4 s[4:7], s[0:1], s35
        s_load_dwordx4 s[72:75], s[0:1], 56
        s_add_u32 s35, s35, 16
        s_load_dwordx2 s[76:77], s[0:1], s35
        s_load_dwordx2 s[78:79], s[0:1], 48
        """)
        if g.stamp: a("s_memrealtime s[96:97]")
        a.c("s61 = head group, sTb = token block, sCb = column group, sTyp = half = 2*sCb + (wave&1), sKc = first k chunk")
        a(f"""
        v_lshrrev_b32 v{vT}, 6, v0
        v_and_b32 v{vLane}, 63, v0
        s_and_b32 s61, s2, 3
        v_readfirstlane_b32 s{sW}, v{vT}
        s_lshr_b32 s{sTb}, s2, 5
        s_bfe_u32 s{sCb}, s2, 0x20003
        s_mul_i32 s{sKc}, s61, {r3}
        s_lshr_b32 s{sKc}, s{sKc}, 1
        s_mul_i32 s35, s{sTb}, {r1}
        s_add_u32 s{sKc}, s{sKc}, s35
        s_mul_i32 s35, s{sCb}, {r2}
        s_add_u32 s{sKc}, s{sKc}, s35
        s_mul_i32 s35, s{sKc}, 26
        s_lshr_b32 s35, s35, 8
        s_mul_i32 s35, s35, 10
        s_sub_u32 s{sKc}, s{sKc}, s35
        s_mul_i32 s{sXo}, s{sTb}, {256*1280}
        s_mul_i32 s{sWo}, s61, 320
        s_mov_b32 s{sX+2}, {2048*1280}
        s_mov_b32 s{sX+3}, 0x20000
        s_mov_b32 s{sWm+2}, {640*3840}
        s_mov_b32 s{sWm+3}, 0x20000
        """)
        a.c("DMA source offsets; W columns: 16-byte piece c of the LDS row comes from byte 16c + (c < s64 ? s65 : s66)")
        a(f"""
        v_lshrrev_b32 v{vT}, 3, v{vLane}
        s_lshl_b32 s35, s{sW}, 5
        v_add_u32 v{vT}, s35, v{vT}
        v_mul_u32_u24 v{vT}, 1280, v{vT}
        v_lshrrev_b32 v{vT+1}, 4, v{vLane}
        v_and_b32 v{vT+2}, 7, v{vLane}
        v_xor_b32 v{vT+2}, v{vT+2}, v{vT+1}
        v_lshl_add_u32 v{vXd[0]}, v{vT+2}, 4, v{vT}
        v_xor_b32 v{vT+2}, 4, v{vT+2}
        v_lshl_add_u32 v{vXd[1]}, v{vT+2}, 4, v{vT}
        v_add_u32 v{vXd[1]}, {8*1280}, v{vXd[1]}
        v_add_u32 v{vXd[2]}, {16*1280}, v{vXd[0]}
        v_add_u32 v{vXd[3]}, {16*1280}, v{vXd[1]}
        s_lshl_b32 s64, s{sCb}, 2
        s_mul_i32 s66, s{sCb}, 1216
        s_sub_u32 s65, s66, 960
        s_min_u32 s66, s66, 2624
        s_cmp_eq_u32 s{sCb}, 0
        s_cselect_b32 s65, 0, s65
        s_lshl_b32 s35, s{sW}, 3
        v_add_u32 v{vT}, s35, v{vT+1}
        v_mul_u32_u24 v{vT}, 3840, v{vT}
        v_and_b32 v{vT+2}, 15, v{vLane}
        v_lshlrev_b32 v{vT+1}, 2, v{vT+1}
        v_xor_b32 v{vT+2}, v{vT+2}, v{vT+1}
        v_mov_b32 v{vT+3}, s65
        v_mov_b32 v{vT+4}, s66
        v_cmp_gt_u32 vcc, s64, v{vT+2}
        v_lshl_add_u32 v{vWd[0]}, v{vT+2}, 4, v{vT}
        s_lshl_b32 s{sM}, s{sW}, 12
        v_cndmask_b32 v{vT+3}, v{vT+4}, v{vT+3}, vcc
        s_lshl_b32 s{sM+1}, s{sW}, 11
        s_add_u32 s{sM+1}, s{sM+1}, 32768
        v_add_u32 v{vWd[0]}, v{vWd[0]}, v{vT+3}
        v_add_u32 v{vWd[1]}, {4*3840}, v{vWd[0]}
        """)
        def dma(stg=None, groups=False):
            stn=f"s{sStg+3}" if stg is None else str(stg*STG)
            G=[[f"s_lshl_b32 s34, s{sKc}, 7", f"s_add_u32 s34, s34, s{sXo}", f"s_mul_i32 s35, s{sKc}, {64*3840}",
                f"s_add_u32 s35, s35, s{sWo}", f"s_add_u32 s36, s{sM}, {stn}", f"s_add_u32 s37, s{sM+1}, {stn}",
                f"s_add_u32 s{sKc}, s{sKc}, 1", f"s_cmp_eq_u32 s{sKc}, 10", f"s_cselect_b32 s{sKc}, 0, s{sKc}"]]
            for k,i in [("x",0),("w",0),("x",1),("w",1),("x",2),("x",3)]:
                q=[f"s_add_u32 m0, s{36 if k=='x' else 37}, {i*1024}", "s_nop 0"]
                if k=="x": q.append(f"buffer_load_dwordx4 v{vXd[i]}, s[{sX}:{sX+3}], s34 offen{lx} lds")
                else: q.append(f"buffer_load_dwordx4 v{vWd[i]}, s[{sWm}:{sWm+3}], s35 offen{lw} lds")
                G.append(q)
            if groups: return G
            for q in G:
                for l in q: a(l)
        npf=0
        G=dma(0,groups=True)
        for l in G[0]: a(l)
        a(f"""
        s_add_u32 m0, s36, 0
        s_waitcnt lgkmcnt(0)
        s_mov_b32 s{sX}, s4
        s_mov_b32 s{sX+1}, s5
        s_mov_b32 s{sWm}, s6
        s_mov_b32 s{sWm+1}, s7
        """)
        a(G[1][-1])
        for q in G[2:]:
            for l in q: a(l)
        if g.stamp: a("v_mov_b32 v240, s96")
        a(f"""
        s_lshl_b32 s{sTyp}, s{sCb}, 1
        s_and_b32 s36, s{sW}, 1
        s_add_u32 s{sTyp}, s{sTyp}, s36
        s_lshl_b32 s35, s{sTyp}, 5
        s_getpc_b64 s[36:37]
        L_pc:
        s_add_u32 s36, s36, L_tab-L_pc
        s_addc_u32 s37, s37, 0
        s_load_dwordx8 s[{sTab}:{sTab+7}], s[36:37], s35
        s_mov_b32 s{sDbg}, s72
        s_mov_b32 s{sDbg+1}, s73
        s_mov_b32 s{sWS}, s74
        s_mov_b32 s{sWS+1}, s75
        s_mov_b32 s{sStg}, 0
        s_and_b32 s35, s2, 7
        s_lshl_b32 s{sFl}, s35, 8
        s_and_b32 s35, s2, 0xf8
        s_add_u32 s{sFl}, s{sFl}, s35
        s_add_u32 s{sFl}, s{sFl}, {F1_OFF}
        """)
        if g.o.get("tlb",4)&4:
            a.c("one wave touches every page the later phases use (values unused) so that their address translations are resident")
            STR=g.o.get("tstride",1<<21); NP=(F2_OFF+4096+STR-1)//STR
            a(f"""
            s_cmp_lg_u32 s{sW}, {g.o.get("twave",7)}
            s_cbranch_scc1 L_ntl
            v_min_u32 v8, {NP-1}, v{vLane}
            v_mul_u32_u24 v8, {STR}, v8
            v_min_u32 v9, {5242880//STR}, v{vLane}
            v_mul_u32_u24 v9, {STR}, v9
            v_min_u32 v9, {5242880-4}, v9
            v_mov_b32 v10, 0
            global_load_dword v163, v8, s[74:75] sc1
            global_load_dword v163, v9, s[78:79] sc1
            global_load_dword v163, v10, s[76:77] sc1
            global_load_dword v163, v10, s[72:73] sc1
            L_ntl:
            """)
        a.c("workgroup 0 picks the tag of this launch")
        a(f"""
        s_lshl_b32 s34, s2, 3
        s_add_u32 s34, s34, s{sW}
        s_cmp_lg_u32 s34, 7
        s_cbranch_scc1 L_nt
        s_memrealtime s[34:35]
        s_waitcnt lgkmcnt(0)
        s_or_b32 s34, s34, 0x10
        v_mov_b32 v8, 0
        v_mov_b32 v10, s34
        v_mov_b32 v11, s35
        s_mov_b64 exec, 1
        global_store_dwordx2 v8, v[10:11], s[{sDbg}:{sDbg+1}] sc1
        s_mov_b64 exec, -1
        L_nt:
        """)
        a.c("fragment addresses")
        a(f"""
        v_and_b32 v{vT}, 31, v{vLane}
        s_lshr_b32 s35, s{sW}, 1
        s_lshl_b32 s35, s35, 13
        v_lshlrev_b32 v{vT+1}, 7, v{vT}
        v_add_u32 v{vT+1}, s35, v{vT+1}
        v_bfe_u32 v{vT+2}, v{vT}, 1, 3
        v_lshrrev_b32 v{vT+3}, 5, v{vLane}
        v_xor_b32 v{vT+2}, v{vT+2}, v{vT+3}
        v_lshl_add_u32 v{vXa[0]}, v{vT+2}, 4, v{vT+1}
        v_xor_b32 v{vXa[1]}, 32, v{vXa[0]}
        v_xor_b32 v{vXa[2]}, 64, v{vXa[0]}
        v_xor_b32 v{vXa[3]}, 96, v{vXa[0]}
        """)
        for tt in range(2):
            for ct in range(2):
                for j in range(16): a(f"v_mov_b32 v{ACC[tt][ct]+j}, 0")
        dma(1)
        a("s_waitcnt lgkmcnt(0)")
        w_frag_addr(a,vWa,vLane,vT,sTab,32768)
        lp=Loop(a,name,NS,STG,ACC,XF,WF,vXa,vWa,lambda tt,ks:tt*4096,6,dma,sC,sStg,True)
        a(f"s_mov_b32 s{sC}, 0\ns_cmp_ge_u32 s{sTyp}, 5\ns_cbranch_scc1 L_p1_v")
        a.c("destination per column tile: s[68+ct] = image stride, s[70+ct] = offset of (first head, key group); tile 0 is Q for halves 0..2, tile 1 for halves 0..1")
        a(f"""
        s_mov_b32 s{sScale}, {f32bits(QSCALE):#x}
        s_mov_b32 s{sScale+1}, {f32bits(QSCALE):#x}
        s_lshl_b32 s36, s{sTb}, 1
        s_lshr_b32 s37, s{sW}, 2
        s_add_u32 s36, s36, s37
        s_mul_i32 s36, s36, 5120
        s_lshl_b32 s35, s{sBlk}, 2
        s_add_u32 s35, s35, s61
        s_mul_i32 s35, s35, {8*Q_IMG}
        s_add_u32 s35, s35, s36
        s_lshl_b32 s34, s35, 1
        s_add_u32 s35, s35, {Q_OFF}
        s_mov_b32 s36, {Q_IMG}
        s_cmp_le_u32 s{sTyp}, 2
        s_cselect_b32 s68, s36, {KV_IMG}
        s_cselect_b32 s70, s35, s34
        s_cmp_le_u32 s{sTyp}, 1
        s_cselect_b32 s69, s36, {KV_IMG}
        s_cselect_b32 s71, s35, s34
        s_bfe_u32 s36, s{sW}, 0x10001
        s_lshl_b32 s37, s36, 9
        s_add_u32 s37, s37, 4096
        s_lshl_b32 s36, s36, 11
        v_and_b32 v{vT}, 0x13, v{vLane}
        v_bfe_u32 v{vT+1}, v{vLane}, 2, 1
        v_lshl_or_b32 v{vT}, v{vT+1}, 3, v{vT}
        v_bfe_u32 v{vT+1}, v{vLane}, 3, 1
        v_lshl_or_b32 v{vT}, v{vT+1}, 2, v{vT}
        v_lshlrev_b32 v{vT}, 4, v{vT}
        v_lshrrev_b32 v{vT+1}, 5, v{vLane}
        v_lshlrev_b32 v{vT+1}, 4, v{vT+1}
        """)
        for ct in range(2):
            for qp in range(2):
                sd=sTab+4*ct+2+qp; n=2*ct+qp; mk=f"s[{sMask+2*n}:{sMask+2*n+1}]"
                a(f"""
                v_lshrrev_b32 v{vT+2}, v{vT+1}, s{sd}
                v_and_b32 v{vT+3}, 31, v{vT+2}
                v_mul_lo_u32 v{vT+3}, v{vT+3}, s{68+ct}
                v_bfe_u32 v{vT+6}, v{vT+2}, 8, 5
                v_mul_lo_u32 v{vSt+2*n+1}, v{vT+6}, s{68+ct}
                v_bfe_u32 v{vT+5}, v{vT+2}, 6, 1
                v_lshl_add_u32 v{vT+5}, v{vT+5}, 9, s36
                v_and_b32 v{vT+2}, 32, v{vT+2}
                v_cmp_ne_u32 {mk}, 0, v{vT+2}
                v_mov_b32 v{vT+6}, s37
                v_add_u32 v{vT+7}, 1024, v{vT+5}
                v_cndmask_b32 v{vT+5}, v{vT+5}, v{vT+6}, {mk}
                v_cndmask_b32 v{vT+7}, v{vT+7}, v{vT+6}, {mk}
                v_add3_u32 v{vSt+2*n}, v{vT+3}, v{vT+5}, v{vT}
                v_add3_u32 v{vSt+2*n+1}, v{vSt+2*n+1}, v{vT+7}, v{vT}
                """)
        def start():
            g.flag1_addr(a)
            a(f"s_mov_b32 s{sD}, s{sWS}\ns_mov_b32 s{sD+1}, s{sWS+1}\ns_mov_b32 s{sD+2}, {O_OFF}\ns_mov_b32 s{sD+3}, 0x20000")
            a(f"s_mov_b32 s{sStg+3}, {(NS-1)*STG}\ns_waitcnt vmcnt({6*(NS-2)+npf})\ns_barrier")
            g.RT(1)
            lp.prologue_reads()
        def publish(tag):
            return f"""
            s_cmp_eq_u32 s{sNon}, 0
            s_cbranch_scc1 L_pub_{tag}
            s_getreg_b32 s34, hwreg(HW_REG_XCC_ID, 0, 4)
            s_xor_b32 s34, s34, s{sNon}
            s_and_b32 s35, s2, 7
            s_lshl_b32 s35, s35, 8
            s_and_b32 s36, s2, 0xf8
            s_add_u32 s35, s35, s36
            s_add_u32 s35, s35, {XT_OFF}
            v_mov_b32 v8, s35
            v_mov_b32 v10, s34
            v_mov_b32 v11, s{sNon+1}
            s_mov_b64 exec, 1
            global_store_dwordx2 v8, v[10:11], s[{sWS}:{sWS+1}] sc1
            s_mov_b64 exec, -1
            L_pub_{tag}:
            """
        g.publish=publish
        def hook1(tag):
            tl=""
            if g.o.get("tlb",4)&1:
                so=("s70","s71") if tag=="qk" else (f"s{sGo}",f"s{sGo}")
                vo=(vSt,vSt+4) if tag=="qk" else (vSt,vSt+1)
                tl=f"""
            s_cmp_eq_u32 s{sC}, 1
            s_cbranch_scc0 L_h0_{tag}
            buffer_load_dword v163, v{vo[0]}, s[{sD}:{sD+3}], {so[0]} offen sc1
            buffer_load_dword v163, v{vo[1]}, s[{sD}:{sD+3}], {so[1]} offen sc1
            L_h0_{tag}:
            """
            return tl+f"""
            s_cmp_eq_u32 s{sC}, 2
            s_cbranch_scc0 L_h1_{tag}
            v_mov_b32 v8, 0
            global_load_dwordx2 v[{vN}:{vN+1}], v8, s[{sDbg}:{sDbg+1}] sc1
            L_h1_{tag}:
            s_cmp_eq_u32 s{sC}, 4
            s_cbranch_scc0 L_h2_{tag}
            v_readfirstlane_b32 s{sNon}, v{vN}
            v_readfirstlane_b32 s{sNon+1}, v{vN+1}
            s_cmp_lg_u32 s{sW}, 0
            s_cbranch_scc1 L_h2_{tag}
            """+publish(tag)+f"""
            L_h2_{tag}:
            """
        def xt_load(v):
            return f"""
            s_and_b32 s35, s2, 7
            s_lshl_b32 s35, s35, 8
            s_add_u32 s35, s35, {XT_OFF}
            v_and_b32 v8, 31, v{vLane}
            v_lshl_add_u32 v8, v8, 3, s35
            global_load_dwordx2 v[{v}:{v+1}], v8, s[{sWS}:{sWS+1}] sc1
            """
        g.xt_load=xt_load
        start()
        lp.emit("qk",False,barpos,hook1("qk"),xt_load(166))
        g.RT(2)
        a("s_waitcnt vmcnt(0)")
        g.local_flag(a,166)
        a(f"s_mov_b32 s57, s63\ns_nop 3")
        for ct in range(2):
            a(f"s_cmp_gt_u32 s{sTyp}, {2-ct}\ns_cbranch_scc1 L_p1_nsc")
            for tt in range(2):
                b=ACC[tt][ct]
                for j in range(0,16,2): a(f"v_pk_mul_f32 {vr(b+j,2)}, {vr(b+j,2)}, s[{sScale}:{sScale+1}]")
        a(f"L_p1_nsc:")
        a("s_cmp_lg_u32 s57, 0\ns_cbranch_scc1 L_p1_loc")
        for st in (st,""):
            P=24
            for ct in range(2):
                for qp in range(2):
                    n=2*ct+qp; sg=P+8*n; mk=f"s[{sMask+2*n}:{sMask+2*n+1}]"
                    b0=ACC[0][ct]+8*qp; b1=ACC[1][ct]+8*qp
                    for k in range(2):
                        a(f"v_cvt_pk_bf16_f32 v{sg+k}, v{b0+2*k}, v{b0+2*k+1}")
                        a(f"v_cvt_pk_bf16_f32 v{b0+k}, v{b0+4+2*k}, v{b0+5+2*k}")
                    for k in range(2):
                        a(f"v_cvt_pk_bf16_f32 v{b0+2+k}, v{b1+2*k}, v{b1+2*k+1}")
                        a(f"v_cvt_pk_bf16_f32 v{sg+6+k}, v{b1+4+2*k}, v{b1+5+2*k}")
                    for k in range(2):
                        a(f"v_cndmask_b32 v{sg+2+k}, v{b0+k}, v{b0+2+k}, {mk}")
                        a(f"v_cndmask_b32 v{sg+4+k}, v{b0+2+k}, v{b0+k}, {mk}")
                    a(f"buffer_store_dwordx4 {vr(sg,4)}, v{vSt+2*n}, s[{sD}:{sD+3}], s{70+ct} offen{st}")
                    a(f"buffer_store_dwordx4 {vr(sg+4,4)}, v{vSt+2*n+1}, s[{sD}:{sD+3}], s{70+ct} offen{st}")
            a("s_branch L_p1_done")
            if st: a("L_p1_loc:")
        st=g.sc("st1")
        a(f"L_p1_v:")
        a(f"""
        s_lshl_b32 s36, s{sTb}, 1
        s_lshr_b32 s37, s{sW}, 2
        s_add_u32 s36, s36, s37
        s_mul_i32 s35, s36, 10240
        s_bfe_u32 s36, s{sW}, 0x10001
        s_mul_i32 s36, s36, 2560
        s_add_u32 s35, s35, s36
        s_lshl_b32 s36, s{sBlk}, 2
        s_add_u32 s36, s36, s61
        s_mul_i32 s36, s36, {8*KV_IMG}
        s_add_u32 s35, s35, s36
        s_add_u32 s{sGo}, s35, 5120
        s_sub_u32 s36, s{sTyp}, 5
        s_lshl_b32 s36, s36, 6
        s_mov_b32 s34, {KV_IMG}
        v_and_b32 v{vT}, 31, v{vLane}
        v_add_u32 v{vT}, s36, v{vT}
        v_lshrrev_b32 v{vT+1}, 5, v{vLane}
        v_mul_u32_u24 v{vT+1}, 320, v{vT+1}
        """)
        for ct in range(2):
            a(f"""
            v_mul_u32_u24 v{vT+2}, 3277, v{vT}
            v_lshrrev_b32 v{vT+2}, 16, v{vT+2}
            v_mul_u32_u24 v{vT+3}, 20, v{vT+2}
            v_sub_u32 v{vT+3}, v{vT}, v{vT+3}
            v_mul_lo_u32 v{vT+2}, v{vT+2}, s34
            v_add_u32 v{vT+4}, 6, v{vT+3}
            v_cmp_gt_u32 vcc, 4, v{vT+3}
            v_subrev_u32 v{vT+5}, 10, v{vT+3}
            v_add_u32 v{vT}, 32, v{vT}
            v_cndmask_b32 v{vT+4}, v{vT+4}, v{vT+3}, vcc
            v_cmp_lt_u32 vcc, 13, v{vT+3}
            v_add_u32 v{vT+2}, v{vT+2}, v{vT+1}
            s_nop 0
            v_cndmask_b32 v{vT+4}, v{vT+4}, v{vT+5}, vcc
            v_lshl_add_u32 v{vSt+ct}, v{vT+4}, 4, v{vT+2}
            v_cmp_lt_u32 vcc, 191, v{vT}
            v_mov_b32 v{vT+4}, 0x7f000000
            s_nop 0
            v_cndmask_b32 v{vSt+ct}, v{vSt+ct}, v{vT+4}, vcc
            """)
        start()
        lp.emit("vv",True,barpos,hook1("vv"),xt_load(166))
        g.RT(2)
        a("s_waitcnt vmcnt(0)")
        g.local_flag(a,166)
        a("s_mov_b32 s57, s63\ns_nop 3\ns_cmp_lg_u32 s57, 0\ns_cbranch_scc1 L_p1_vloc")
        for fl in (st,""):
            for tt,ct in ((0,0),(0,1),(1,1),(1,0)):
                b=ACC[tt][ct]
                for j in range(8): a(f"v_cvt_pk_bf16_f32 v{b+j}, v{b+2*j}, v{b+2*j+1}")
                for s in range(2):
                    a(f"buffer_store_dwordx4 {vr(b+4*s,4)}, v{vSt+ct}, s[{sD}:{sD+3}], s{sGo} offen offset:{tt*1280+s*640}{fl}")
            if fl: a("s_branch L_p1_done\nL_p1_vloc:")
        a(f"L_p1_done:")
        g.pub1=(sFl,vN)

    def attn(g):
        a=g.a; name="p2"; o=g.o
        unroll=o.get("unroll",3); prio=o.get("prio",(84,84)); npro=4; ld=g.sc("ld2"); st=g.sc("st2")
        vLane=1; vKn=2; vVn=3; vFl=4; vIdx=5; vKb=6; vVb=7; vT=8
        Q1=[16,20]; Q2e=[24,26]; Q2o=[28,30]
        K1=[32,36,40,44]; K2=48
        V=[[52+8*t+4*s for s in range(2)] for t in range(4)]
        SB=[84+16*i for i in range(4)]
        O=[148,164]
        sKV=8; sQ=12; sO=16; sW=sWave; sG=21; sVM=22; sDma=39
        vmask=0
        for i in range(32):
            if isinstance(row_dim(i),int): vmask|=1<<i
        a(f"""
        s_and_b32 s26, s2, 7
        s_lshr_b32 s27, s2, 3
        s_lshr_b32 s28, s26, 2
        s_and_b32 s29, s26, 3
        s_lshl_b32 s29, s29, 3
        s_and_b32 s30, s27, 7
        s_add_u32 s29, s29, s30
        s_lshr_b32 s30, s27, 3
        s_lshl_b32 s31, s28, 5
        s_add_u32 s31, s31, s29
        """)
        a.c("s28=blk s29=head s30=qb s31=p")
        a(f"""
        s_mul_i32 s32, s31, {KV_IMG}
        s_mul_i32 s33, s31, {Q_IMG}
        s_add_u32 s33, s33, {Q_OFF}
        s_mul_i32 s34, s28, {O_BLK}
        s_add_u32 s34, s34, {O_OFF}
        s_mov_b32 s{sKV+2}, {KV_IMG}
        s_mov_b32 s{sKV+3}, 0x20000
        s_mov_b32 s{sQ+2}, {Q_IMG}
        s_mov_b32 s{sQ+3}, 0x20000
        s_mov_b32 s{sO+2}, {O_BLK}
        s_mov_b32 s{sO+3}, 0x20000
        s_add_u32 s{sKV}, s{sWS}, s32
        s_addc_u32 s{sKV+1}, s{sWS+1}, 0
        s_add_u32 s{sQ}, s{sWS}, s33
        s_addc_u32 s{sQ+1}, s{sWS+1}, 0
        s_add_u32 s{sO}, s{sWS}, s34
        s_addc_u32 s{sO+1}, s{sWS+1}, 0
        v_lshlrev_b32 v{vKb}, 4, v{vLane}
        s_lshl_b32 s35, s30, 2
        s_lshr_b32 s36, s{sW}, 1
        s_add_u32 s35, s35, s36
        s_mul_i32 s35, s35, 5120
        s_and_b32 s36, s{sW}, 1
        s_lshl_b32 s37, s36, 11
        s_add_u32 s37, s37, s35
        s_lshl_b32 s38, s36, 9
        s_add_u32 s38, s38, s35
        s_add_u32 s38, s38, 4096
        s_lshl_b32 s{sDma}, s{sW}, 10
        s_mov_b32 m0, s{sDma}
        """)
        a.c("per-lane V address: h*320 + slot(dim(row))*16 + 5120")
        a(f"""
        v_and_b32 v{vT}, 31, v{vLane}
        v_bfe_u32 v{vT+1}, v{vT}, 2, 1
        v_and_b32 v{vT+2}, 3, v{vT}
        v_lshrrev_b32 v{vT+3}, 3, v{vT}
        v_lshl_add_u32 v{vT+2}, v{vT+3}, 2, v{vT+2}
        v_mul_u32_u24 v{vT+1}, 10, v{vT+1}
        v_add_u32 v{vT+1}, v{vT+1}, v{vT+2}
        v_add_u32 v{vT+3}, 6, v{vT+1}
        v_cmp_gt_u32 vcc, 4, v{vT+1}
        s_mov_b32 s{sVM}, {vmask:#x}
        s_mov_b32 s{sVM+1}, {vmask:#x}
        v_cndmask_b32 v{vT+3}, v{vT+3}, v{vT+1}, vcc
        v_cmp_lt_u32 vcc, 13, v{vT+1}
        v_subrev_u32 v{vVb}, 10, v{vT+1}
        s_nop 0
        v_cndmask_b32 v{vT+3}, v{vT+3}, v{vVb}, vcc
        v_lshlrev_b32 v{vT+3}, 4, v{vT+3}
        v_lshrrev_b32 v{vVb}, 5, v{vLane}
        v_mul_u32_u24 v{vVb}, 320, v{vVb}
        v_add_u32 v{vVb}, v{vVb}, v{vT+3}
        v_add_u32 v{vVb}, 5120, v{vVb}
        v_cmp_eq_u32 vcc, 10, v{vT+2}
        v_mov_b32 v{vIdx}, 0xdddddddd
        v_mov_b32 v{vT+3}, 0x3f803f80
        v_cndmask_b32 v{vT+3}, 0, v{vT+3}, vcc
        v_lshlrev_b32 v{vT+1}, 4, v{vT}
        """)
        for t in range(4):
            for s in range(2):
                for j in range(4): a(f"v_mov_b32 v{V[t][s]+j}, v{vT+3}")
        for j in range(16): a(f"v_mov_b32 v{SB[3]+j}, 0")
        a.c("Wo staging: piece n = 64u + lane of a k step -> LDS row rho = n/10, 16-byte column n%10; source row in the k order of the O image")
        W0=182; Tm=192
        for u in range(5):
            a(f"""
            v_add_u32 v{Tm}, {64*u}, v{vLane}
            v_mul_u32_u24 v{Tm+1}, 6554, v{Tm}
            v_lshrrev_b32 v{Tm+1}, 16, v{Tm+1}
            v_mul_u32_u24 v{Tm+2}, 10, v{Tm+1}
            v_sub_u32 v{Tm}, v{Tm}, v{Tm+2}
            v_lshlrev_b32 v{Tm}, 4, v{Tm}
            v_lshrrev_b32 v{Tm+2}, 4, v{Tm+1}
            v_bfe_u32 v{Tm+3}, v{Tm+1}, 2, 1
            v_mul_u32_u24 v{Tm+3}, 10, v{Tm+3}
            v_bfe_u32 v{Tm+4}, v{Tm+1}, 3, 1
            v_and_b32 v{Tm+5}, 3, v{Tm+1}
            v_lshl_add_u32 v{Tm+6}, v{Tm+4}, 2, v{Tm+5}
            v_mad_u32_u24 v{Tm+5}, v{Tm+2}, 20, v{Tm+3}
            v_add_u32 v{Tm+5}, v{Tm+5}, v{Tm+6}
            v_mul_u32_u24 v{Tm+5}, 1280, v{Tm+5}
            v_add_u32 v{W0+u}, v{Tm+5}, v{Tm}
            v_mul_u32_u24 v{Tm+2}, 80, v{Tm+2}
            v_add_u32 v{Tm+2}, v{Tm+2}, v{Tm+3}
            v_mad_u32_u24 v{Tm+2}, v{Tm+4}, 40, v{Tm+2}
            v_bfe_u32 v{Tm+3}, v{Tm+1}, 1, 1
            v_mad_u32_u24 v{Tm+2}, v{Tm+3}, 20, v{Tm+2}
            v_and_b32 v{Tm+3}, 1, v{Tm+1}
            v_add3_u32 v{Tm+2}, v{Tm+2}, v{Tm+3}, 8
            v_mul_u32_u24 v{Tm+2}, 1280, v{Tm+2}
            v_add_u32 v{W0+5+u}, v{Tm+2}, v{Tm}
            """)
        a(f"""
        v_mov_b32 v{vKn}, v{vKb}
        v_mov_b32 v{vVn}, v{vVb}
        """)
        a.c("publish: every wave's stores are done, then one lane writes the tag of this launch")
        a(f"""
        s_cmp_lg_u32 s{sW}, {g.o.get('pw1',7)}
        s_cbranch_scc1 L_p1_nq
        {"global_load_dwordx2 v[164:165], v162, s[88:89] sc1" if g.o.get("spec1",0) else ""}
        L_p1_nq:
        s_waitcnt vmcnt(0)
        """)
        g.RT(3)
        a("s_barrier")
        g.get_nonce(a,"a",g.pub1[1])
        a(f"s_cmp_lg_u32 s{sW}, 0\ns_cbranch_scc1 L_p1_ns")
        g.signal(a,g.pub1[0],"1",57)
        a("L_p1_ns:")
        a(f"s_cmp_lg_u32 s{sW}, {g.o.get('pw1',7)}\ns_cbranch_scc1 L_p2_np")
        g.poll(a,162,"1",164)
        a("L_p2_np:\ns_barrier")
        g.RT(4)
        def dma():
            return [f"buffer_load_dwordx4 v{vKb}, s[{sKV}:{sKV+3}], s{sDma} offen{ld} lds",
                    f"s_add_u32 s{sDma}, s{sDma}, 8192", f"s_mov_b32 m0, s{sDma}"]
        for l in dma(): a(l)
        a(f"""
        buffer_load_dwordx4 {vr(Q1[0],4)}, v{vKb}, s[{sQ}:{sQ+3}], s37 offen{g.sc("ldq")}
        buffer_load_dwordx4 {vr(12,4)}, v{vT+1}, s[{sQ}:{sQ+3}], s38 offen{g.sc("ldq")}
        """)
        op=0; late=o.get("late3",1)
        def rest():
            a(f"buffer_load_dwordx4 {vr(Q1[1],4)}, v{vKb}, s[{sQ}:{sQ+3}], s37 offen offset:1024{g.sc('ldq')}")
            for m in range(1,npro):
                for l in dma(): a(l)
                a("s_nop 0")
        if not late: rest()
        for q in range(2):
            for j in range(16): a(f"v_mov_b32 v{O[q]+j}, 0")
        a(f"v_cmp_gt_u32 vcc, 32, v{vLane}\ns_waitcnt vmcnt({0 if late else npro})\ns_barrier")
        a(f"ds_read_b128 {vr(K1[0],4)}, v{vKb}")
        a(f"ds_read_b128 {vr(K2,4)}, v{vKb} offset:4096")
        for t in range(1,4): a(f"ds_read_b128 {vr(K1[t],4)}, v{vKb} offset:{t*1024}")
        a(f"s_mov_b64 exec, s[{sVM}:{sVM+1}]")
        for t in range(3 if op else 2):
            for s in range(2): a(f"ds_read_b128 {vr(V[t][s],4)}, v{vVb} offset:{t*1280+s*640}")
        a(f"s_mov_b64 exec, -1\ns_mov_b32 s{sG}, 0")
        if late: rest()
        a.c("Q2 variants: e = extras in lanes 0-31 only, o = in lanes 32-63 only")
        for q in range(2):
            for j in range(2):
                a(f"v_cndmask_b32 v{Q2e[q]+j}, 0, v{12+2*q+j}, vcc")
                a(f"v_cndmask_b32_e64 v{Q2o[q]+j}, v{12+2*q+j}, 0, vcc")
        a(f"s_waitcnt lgkmcnt({9 if op else 7})")
        def qk1(n):
            kt=(n>>1)&3; qt=n&1
            return f"v_mfma_f32_32x32x16_bf16 {vr(SB[n%4],16)}, {vr(K1[kt],4)}, {vr(Q1[qt],4)}, 0"
        def qk2(n):
            kt=(n>>1)&3; qt=n&1
            q2=(Q2e if kt<2 else Q2o)[qt]
            return f"v_mfma_f32_32x32x8_bf16 {vr(SB[n%4],16)}, {vr(K2+2*(kt&1),2)}, {vr(q2,2)}, {vr(SB[n%4],16)}"
        def pv(n,s):
            kt=(n>>1)&3; qt=n&1
            return f"v_smfmac_f32_32x32x32_bf16 {vr(O[qt],16)}, {vr(V[kt][s],4)}, {vr(SB[n%4]+8*s,8)}, v{vIdx}"
        a(qk1(0)); a(qk2(0))
        a(f"s_waitcnt vmcnt({npro-1})\ns_nop 7\ns_nop 2")
        g.RT(5)
        def group_body(u, last, dmas, first=False, dmaf=None):
            body=[]; held=[]; dmaf=dmaf or dma
            def ex(n,j0):
                body.append(("q",4*n+j0//4))
                for j in range(j0,j0+4): body.append(("i",f"v_exp_f32 v{SB[n%4]+j}, v{SB[n%4]+j}"))
            nx=(u+1)*10240; cu=u*10240
            for n in range(8):
                m=n+1; kt=(m>>1)&3
                A=[];B=[];C=[]
                if m&1 and m<8: A.append(("read",f"K1{kt}",f"ds_read_b128 {vr(K1[kt],4)}, v{vKn} offset:{nx+kt*1024}",True))
                if m==5: B.append(("read","K20",f"ds_read_b64 {vr(K2,2)}, v{vKn} offset:{nx+4096}",True))
                if m==7: B.append(("read","K21",f"ds_read_b64 {vr(K2+2,2)}, v{vKn} offset:{nx+4096+8}",True))
                for k in range(dmas[n]):
                    for l in dmaf(): B.append(("i",l))
                    if k+1<dmas[n]: B.append(("i","s_nop 0"))
                pn=(n-1)%8; pk=pn>>1
                if pn&1 and not (last and pk!=3):
                    off=cu if pk==3 else nx
                    C.append(("i",f"s_mov_b64 exec, s[{sVM}:{sVM+1}]"))
                    for s in range(2): C.append(("read",f"V{pk}{s}",f"ds_read_b128 {vr(V[pk][s],4)}, v{vVn} offset:{off+pk*1280+s*640}",pk!=3))
                    C.append(("i","s_mov_b64 exec, -1"))
                if first and n<SYNC:
                    held+=[x for x in A if x[0]=="read"]; A=[]
                    if C and pk==3 and op: pass
                    elif C and pk==3:
                        held+=[C[0]]+[("read",f"V2{s_}",f"ds_read_b128 {vr(V[2][s_],4)}, v{vVn} offset:{2*1280+s_*640}",False) for s_ in range(2)]+C[1:]; C=[]
                    elif C: held+=C; C=[]
                if first and n==SYNC:
                    body.append(("i",f"s_waitcnt vmcnt({sum(dmas[:SYNC])})")); body.append(("i","s_barrier"))
                    body+=held
                body.append(("slot",n))
                if not (last and m==8):
                    body.append(("use",f"K1{kt}")); body.append(("i",qk1(m)))
                body+=A
                ex(n,0)
                if not (last and m==8):
                    body.append(("use",f"K2{kt&1}")); body.append(("i",qk2(m)))
                body+=B
                ex(n,4)
                body.append(("use",f"V{pk}0")); body.append(("i",pv(pn,0)))
                ex(n,8)
                body.append(("use",f"V{pk}1")); body.append(("i",pv(pn,1)))
                body+=C
                ex(n,12)
            return body
        SYNC=o.get('sync',4)
        gb=group_body(0,False,[0]*8)
        def need(nm,at):
            L=len(gb); cnt=0; i=at-1
            while True:
                b=gb[i%L]
                if b[0]=="read":
                    if b[1]==nm: return cnt
                    cnt+=1
                i-=1
        slotpos=[i for i,b in enumerate(gb) if b[0]=="slot"]+[len(gb)]
        waits={}
        for k in range(8):
            w=99
            for i in range(slotpos[k],slotpos[k+1]):
                if gb[i][0]=="use":
                    for j in range(slotpos[k],i): assert not (gb[j][0]=="read" and gb[j][1]==gb[i][1])
                    w=min(w,need(gb[i][1],slotpos[k]))
            waits[k]=w
        def exact_waits(seq, queue):
            q=list(queue); res={}; pos=[i for i,b in enumerate(seq) if b[0]=="slot"]+[len(seq)]
            for i,b in enumerate(seq):
                if b[0]=="read": q.append(b[1])
                if b[0]=="slot":
                    nxt=min(p for p in pos if p>i); w=99
                    for j in range(i,nxt):
                        if seq[j][0]=="use":
                            for jj in range(i,j): assert not (seq[jj][0]=="read" and seq[jj][1]==seq[j][1])
                            if seq[j][1] in q:
                                last_i=len(q)-1-q[::-1].index(seq[j][1]); w=min(w,len(q)-1-last_i)
                    if w<99:
                        assert w<=15
                        res[i]=w; q=q[len(q)-w:] if w else []
            return res
        def emit(body,last=False,qbase=0,pr=None,ew=None):
            if last: body=[b for b in body if not (b[0]=="read" and b[3])]
            for i,b in enumerate(body):
                if b[0]=="slot":
                    w=waits[b[1]] if ew is None else ew.get(i)
                    if last: w={0:waits[0],1:0,7:0}.get(b[1])
                    if w is not None: a(f"s_waitcnt lgkmcnt({w})")
                elif b[0]=="q":
                    if pr is not None:
                        q=qbase+b[1]
                        if q%32==0 and (q==0 or ew is not None): a("s_setprio 1")
                        if q==pr: a("s_setprio 0")
                elif b[0]=="i": a(b[1])
                elif b[0]=="read": a(b[2])
        d=[2]*8
        pr=prio[0]; p1=max(pr-32*(unroll-1),1)
        seq=group_body(0,False,d,first=True)+group_body(1,False,[0]*8)
        emit(seq,pr=p1,ew=exact_waits(seq,["K11","K12","K13","V00","V01","V10","V11"]+(["V20","V21"] if op else [])))
        a(f"""
        v_add_u32 v{vKn}, {2*10240}, v{vKn}
        v_add_u32 v{vVn}, {2*10240}, v{vVn}
        s_waitcnt vmcnt(0)
        s_barrier
        """)
        nloop=13//unroll; tail=13-nloop*unroll
        a(".p2align 5")
        a(f"L_p2_loop:")
        for u in range(unroll): emit(group_body(u,False,[0]*8),qbase=32*u,pr=pr)
        a(f"""
        s_add_u32 s{sG}, s{sG}, 1
        v_add_u32 v{vKn}, {unroll*10240}, v{vKn}
        v_add_u32 v{vVn}, {unroll*10240}, v{vVn}
        s_cmp_lg_u32 s{sG}, {nloop}
        s_cbranch_scc1 L_p2_loop
        """)
        assert tail==1
        a.c("key groups 0..13 are consumed by every wave: stage the Wo rows of the projection tile over groups 0..11")
        a(f"""
        s_lshr_b32 s40, s2, 3
        s_and_b32 s40, s40, 7
        s_mul_i32 s40, s40, 160
        s_mov_b32 s{sQ}, s76
        s_mov_b32 s{sQ+1}, s77
        s_mov_b32 s{sQ+2}, {640*1280}
        s_mul_i32 s46, s{sW}, {40*1280}
        s_add_u32 s46, s46, s40
        s_add_u32 s47, s46, {320*1280}
        s_mul_i32 s48, s{sW}, {160*1280}
        s_add_u32 s48, s48, s40
        s_mul_i32 s{sDma}, s{sW}, 5120
        s_mov_b32 m0, s{sDma}
        s_barrier
        """)
        if o.get("tlb",4)&2:
            a.c("warm the address translation of the O image and of the output (values unused)")
            a(f"""
            v_min_u32 v8, 4, v{vLane}
            v_mul_u32_u24 v8, 0x13ff00, v8
            v_lshrrev_b32 v9, 1, v8
            global_load_dword v10, v8, s[78:79] sc1
            buffer_load_dword v11, v9, s[{sO}:{sO+3}], 0 offen sc1
            """)
        cnt=[0]
        def dmaw():
            r,u=divmod(cnt[0],5); cnt[0]+=1
            r2_,u2=divmod(cnt[0],5)
            return [f"buffer_load_dwordx4 v{W0+5*(r==2)+u}, s[{sQ}:{sQ+3}], s{46+r} offen lds",
                    f"s_add_u32 m0, s{sDma}, {r2_*40960+u2*1024}"]
        emit(group_body(0,False,[2,2,2,2,2,2,2,1],dmaf=dmaw),pr=p1)
        emit(group_body(tail,True,[0]*8),last=True,pr=p1)
        a(pv(7,0)); a(pv(7,1))
        g.RT(6)
        a.c("O image: [blk][q tile][40 fragments of 1 KiB]: fragment head = dims 10h..10h+7, fragment 32+(head>>2) dword head&3 = dims 10h+8,9")
        a(f"""
        s_setprio 0
        s_lshl_b32 s35, s30, 4
        s_lshl_b32 s36, s{sW}, 1
        s_add_u32 s35, s35, s36
        s_mul_i32 s35, s35, 40960
        s_lshr_b32 s36, s29, 2
        s_lshl_b32 s36, s36, 10
        s_and_b32 s37, s29, 3
        s_lshl_b32 s37, s37, 2
        s_add_u32 s36, s36, s37
        s_add_u32 s36, s36, 32768
        s_add_u32 s33, s35, s36
        s_lshl_b32 s36, s29, 10
        s_add_u32 s35, s35, s36
        """)
        a.c("safety check of the unshifted softmax: 2^-16 <= l <= 2^60 and finite accumulators, else redo with the true max")
        a(f"""
        s_mov_b32 s36, 0x37800000
        s_mov_b32 s37, 0x5d800000
        s_mov_b32 s38, 0x7f800000
        s_mov_b64 s[46:47], -1
        """)
        for q in range(2):
            a(f"v_cmp_le_f32 vcc, s36, v{O[q]+10}\ns_and_b64 s[46:47], s[46:47], vcc")
            a(f"v_cmp_ge_f32 vcc, s37, v{O[q]+10}\ns_and_b64 s[46:47], s[46:47], vcc")
            a(f"v_add_f32_e64 v{vT+2}, abs(v{O[q]}), abs(v{O[q]+1})")
            for j in range(2,10): a(f"v_add_f32_e64 v{vT+2}, v{vT+2}, abs(v{O[q]+j})")
            a(f"v_cmp_gt_f32 vcc, s38, v{vT+2}\ns_and_b64 s[46:47], s[46:47], vcc")
        a(f"""
        s_cmp_eq_u64 s[46:47], -1
        s_cbranch_scc0 L_p2_slow
        L_p2_fin:
        """)
        for q in range(2):
            a(f"v_rcp_f32 v{vT+2}, v{O[q]+10}\ns_nop 0")
            for j in range(10): a(f"v_mul_f32 v{O[q]+j}, v{O[q]+j}, v{vT+2}")
            for j in range(5): a(f"v_cvt_pk_bf16_f32 v{O[q]+j}, v{O[q]+2*j}, v{O[q]+2*j+1}")
        a("s_add_u32 s36, s35, 40960\ns_add_u32 s37, s33, 40960\ns_mov_b32 s63, 0")
        for q in range(2):
            a(f"buffer_store_dwordx4 {vr(O[q],4)}, v{vKb}, s[{sO}:{sO+3}], s{35+q} offen{st}")
            a(f"buffer_store_dword v{O[q]+4}, v{vKb}, s[{sO}:{sO+3}], s{33+4*q} offen{st}")
        a.c("flag of this tile: F2 + (blk*4+qb)*256 + head*8")
        a(f"""
        s_lshl_b32 s40, s28, 2
        s_add_u32 s40, s40, s30
        s_lshl_b32 s40, s40, 8
        s_lshl_b32 s41, s29, 3
        s_add_u32 s40, s40, s41
        s_add_u32 s40, s40, {F2_OFF}
        s_and_b32 s41, s2, 7
        s_lshl_b32 s41, s41, 8
        s_add_u32 s41, s41, {F2_OFF}
        v_and_b32 v22, 31, v{vLane}
        v_lshl_add_u32 v22, v22, 3, s41
        s_cmp_lg_u32 s{sW}, {g.o.get('pw2',7)}
        s_cbranch_scc1 L_p2_nq
        {"global_load_dwordx2 v[24:25], v22, s[88:89] sc1" if g.o.get("spec2",0) else ""}
        L_p2_nq:
        s_waitcnt vmcnt(0)
        """)
        g.RT(7)
        a("s_barrier")
        t=g.tail; M=[SB[2],SB[3]]
        t(f"L_p2_slow:")
        t(f"v_mov_b32 v{vT+4}, 0xff800000\nv_mov_b32 v{vT+5}, 0xff800000")
        for ps in range(2):
            t(f"""
            v_mov_b32 v{vKn}, v{vKb}
            v_mov_b32 v{vVn}, v{vVb}
            s_mov_b32 s{sG}, 0
            L_p2_slow{ps}:
            """)
            for tt in range(4): t(f"buffer_load_dwordx4 {vr(K1[tt],4)}, v{vKn}, s[{sKV}:{sKV+3}], 0 offen offset:{tt*1024}{ld}")
            t(f"s_movk_i32 s40, 0x1000\nbuffer_load_dwordx4 {vr(K2,4)}, v{vKn}, s[{sKV}:{sKV+3}], s40 offen{ld}")
            if ps==1:
                t(f"s_mov_b64 exec, s[{sVM}:{sVM+1}]")
                for tt in range(4):
                    for s in range(2):
                        off=tt*1280+s*640
                        t(f"buffer_load_dwordx4 {vr(V[tt][s],4)}, v{vVn}, s[{sKV}:{sKV+3}], {'0' if off<4096 else 's40'} offen offset:{off%4096}{ld}")
                t("s_mov_b64 exec, -1")
            t("s_waitcnt vmcnt(0)")
            for n in range(8):
                kt=n>>1; qt=n&1; sb=SB[0]
                q2=(Q2e if kt<2 else Q2o)[qt]
                c="0" if ps==0 else vr(M[qt],16)
                t(f"v_mfma_f32_32x32x16_bf16 {vr(sb,16)}, {vr(K1[kt],4)}, {vr(Q1[qt],4)}, {c}")
                t(f"v_mfma_f32_32x32x8_bf16 {vr(sb,16)}, {vr(K2+2*(kt&1),2)}, {vr(q2,2)}, {vr(sb,16)}")
                t("s_nop 15")
                if ps==0:
                    for j in range(0,16,2): t(f"v_max3_f32 v{vT+4+qt}, v{vT+4+qt}, v{sb+j}, v{sb+j+1}")
                else:
                    for j in range(16): t(f"v_exp_f32 v{sb+j}, v{sb+j}")
                    t("s_nop 1")
                    for s in range(2): t(f"v_smfmac_f32_32x32x32_bf16 {vr(O[qt],16)}, {vr(V[kt][s],4)}, {vr(sb+8*s,8)}, v{vIdx}")
            t(f"""
            v_add_u32 v{vKn}, 10240, v{vKn}
            v_add_u32 v{vVn}, 10240, v{vVn}
            s_add_u32 s{sG}, s{sG}, 1
            s_cmp_lg_u32 s{sG}, 16
            s_cbranch_scc1 L_p2_slow{ps}
            """)
            if ps==0:
                t.c("combine the two half-waves (same query, other 16 keys), negate, broadcast; clear O")
                for q in range(2):
                    t(f"""
                    v_mov_b32 v{vT+6}, v{vT+4+q}
                    v_mov_b32 v{vT+7}, v{vT+4+q}
                    s_nop 1
                    v_permlane32_swap_b32 v{vT+6}, v{vT+7}
                    s_nop 1
                    v_max_f32 v{vT+6}, v{vT+6}, v{vT+7}
                    v_sub_f32 v{vT+6}, 0, v{vT+6}
                    """)
                    for j in range(16): t(f"v_mov_b32 v{M[q]+j}, v{vT+6}")
                    for j in range(16): t(f"v_mov_b32 v{O[q]+j}, 0")
        t(f"s_nop 15\ns_branch L_p2_fin")

    def proj(g):
        a=g.a; ld=g.sc("ld3")
        vLane=1; vXd=2; vWa=3; vSt=4; vRd=6; vT=8
        WF=[[28+4*c for c in range(5)],[48+4*c for c in range(5)]]
        ACC=[68+4*c for c in range(5)]
        X=[88+4*f for f in range(20)]
        sX=8; sD=16; sW=sWave; sBlk=28; sTb=29; sCb=30; sXo=25; sWo=26
        a(f"""
        s_cmp_lg_u32 s{sW}, 0
        s_cbranch_scc1 L_p3_go
        """)
        g.signal(a,40,"2",63)
        a(f"""
        L_p3_go:
        s_and_b32 s34, s2, 7
        s_lshr_b32 s33, s2, 3
        s_lshr_b32 s{sBlk}, s34, 2
        s_and_b32 s34, s34, 3
        s_and_b32 s{sCb}, s33, 7
        s_lshr_b32 s35, s33, 3
        s_lshl_b32 s{sTb}, s34, 2
        s_add_u32 s{sTb}, s{sTb}, s35
        s_lshr_b32 s20, s{sW}, 1
        s_and_b32 s21, s{sW}, 1
        s_lshl_b32 s{sXo}, s{sTb}, 2
        s_add_u32 s{sXo}, s{sXo}, s20
        s_mul_i32 s{sXo}, s{sXo}, 40960
        s_lshl_b32 s35, s21, 8
        s_add_u32 s{sXo}, s{sXo}, s35
        s_mul_i32 s{sWo}, s{sCb}, 160
        s_mov_b32 s{sX+2}, {O_BLK}
        s_mov_b32 s{sX+3}, 0x20000
        s_mul_i32 s35, s{sBlk}, {O_BLK}
        s_add_u32 s35, s35, {O_OFF}
        s_add_u32 s{sX}, s{sWS}, s35
        s_addc_u32 s{sX+1}, s{sWS+1}, 0
        s_cmp_ge_u32 s{sCb}, 5
        s_cselect_b32 s35, 5, 0
        s_sub_u32 s42, s{sCb}, s35
        """)
        if not g.o.get("rot3",False): a("s_mov_b32 s42, 0")
        a.c("transposing read address: (16(g>>1) + 4(g&1) + r)*160 + c4*8 + k half*10240")
        a(f"""
        v_lshrrev_b32 v{vT}, 4, v{vLane}
        v_lshrrev_b32 v{vT+2}, 1, v{vT}
        v_lshlrev_b32 v{vT+2}, 4, v{vT+2}
        v_and_b32 v{vT+3}, 1, v{vT}
        v_lshl_add_u32 v{vT+2}, v{vT+3}, 2, v{vT+2}
        v_bfe_u32 v{vT+3}, v{vLane}, 2, 2
        v_add_u32 v{vT+2}, v{vT+2}, v{vT+3}
        v_mul_u32_u24 v{vT+2}, 160, v{vT+2}
        v_and_b32 v{vT+3}, 3, v{vLane}
        v_lshl_add_u32 v{vWa}, v{vT+3}, 3, v{vT+2}
        """)
        a.c("round R handles k steps 4r..4r+3, r = (R + column block) mod 5: s[44+R] = X offset, v[16+R] = W address")
        for R in range(5):
            a(f"""
            s_lshl_b32 s{44+R}, s42, 13
            s_add_u32 s{44+R}, s{44+R}, s{sXo}
            s_add_u32 s{64+R}, s{44+R}, 4096
            s_mul_i32 s35, s42, 20480
            v_add_u32 v{16+R}, s35, v{vWa}
            s_add_u32 s42, s42, 1
            s_cmp_eq_u32 s42, 5
            s_cselect_b32 s42, 0, s42
            """)
        a(f"""
        v_and_b32 v{vT+1}, 15, v{vLane}
        v_lshlrev_b32 v{vXd}, 9, v{vT}
        v_lshl_add_u32 v{vXd}, v{vT+1}, 4, v{vXd}
        v_and_b32 v{vT+2}, 3, v{vLane}
        v_bfe_u32 v{vT+3}, v{vLane}, 2, 1
        v_lshl_or_b32 v{vT+2}, v{vT+3}, 3, v{vT+2}
        v_bfe_u32 v{vT+3}, v{vLane}, 3, 1
        v_lshl_or_b32 v{vT+2}, v{vT+3}, 2, v{vT+2}
        v_mul_u32_u24 v{vT+2}, 2560, v{vT+2}
        v_lshl_add_u32 v{vSt+1}, v{vT}, 3, v{vT+2}
        v_and_b32 v{vT+3}, 1, v{vT}
        v_lshl_add_u32 v{vT+2}, v{vT+3}, 5, v{vT+2}
        v_lshrrev_b32 v{vT+3}, 1, v{vT}
        v_lshl_add_u32 v{vSt}, v{vT+3}, 4, v{vT+2}
        s_mov_b32 s{sD+2}, {2048*2560}
        s_mov_b32 s{sD+3}, 0x20000
        s_lshl_b32 s40, s{sTb}, 7
        s_lshl_b32 s41, s20, 5
        s_add_u32 s40, s40, s41
        s_lshl_b32 s41, s21, 4
        s_add_u32 s40, s40, s41
        s_mul_i32 s40, s40, 2560
        s_mul_i32 s41, s{sBlk}, 1280
        s_add_u32 s40, s40, s41
        s_add_u32 s40, s40, s{sWo}
        s_mov_b32 s{sD}, s78
        s_mov_b32 s{sD+1}, s79
        """)
        def wreads(f,buf):
            return ["\n".join(f"ds_read_b64_tr_b16 {vr(WF[buf][c]+2*sec,2)}, v{16+f//4} offset:{(f%4)*5120+sec*1280+c*32}" for sec in range(2)) for c in range(5)]
        for x in wreads(0,0): a(x)
        a(f"s_cmp_lg_u32 s{sW}, {g.o.get('pw2',7)}\ns_cbranch_scc1 L_p3_np")
        g.poll(a,22,"2",24)
        a("L_p3_np:\ns_barrier")
        g.RT(8)
        UP=g.o.get("up3",20)
        def xload(f): return f"buffer_load_dwordx4 {vr(X[f],4)}, v{vXd}, s[{sX}:{sX+3}], s{(44 if (f&3)<2 else 64)+f//4} offen offset:{(f&1)*2048}{ld}"
        for f in range(UP): a(xload(f))
        issued=UP
        for f in range(20):
            buf=f&1
            rd=wreads(f+1,buf^1) if f<19 else []
            a(f"s_waitcnt vmcnt({issued-f-1})")
            if g.stamp and g.o.get("st3")==f: a("s_memrealtime s[96:97]\ns_waitcnt lgkmcnt(0)\nv_mov_b32 v241, s96")
            for c in range(5):
                if c in (0,3): a(f"s_waitcnt lgkmcnt({(4 if c==0 else 6) if rd else (4 if c==0 else 0)})")
                d=vr(ACC[c],4)
                a(f"v_mfma_f32_16x16x32_bf16 {d}, {vr(WF[buf][c],4)}, {vr(X[f],4)}, {'0' if f==0 else d}")
                if rd: a(rd[c])
                if c in (1,3) and issued<20:
                    a(xload(issued)); issued+=1
        g.RT(9)
        a("s_nop 7")
        for p in range(2):
            A0=ACC[2*p]; A1=ACC[2*p+1]
            a(f"v_cvt_pk_bf16_f32 v{A0}, v{A0}, v{A0+1}\nv_cvt_pk_bf16_f32 v{A0+1}, v{A0+2}, v{A0+3}")
            a(f"v_cvt_pk_bf16_f32 v{A0+2}, v{A1}, v{A1+1}\nv_cvt_pk_bf16_f32 v{A0+3}, v{A1+2}, v{A1+3}")
            a("s_nop 1")
            a(f"v_permlane16_swap_b32 v{A0}, v{A0+2}\nv_permlane16_swap_b32 v{A0+1}, v{A0+3}")
            a(f"buffer_store_dwordx4 {vr(A0,4)}, v{vSt}, s[{sD}:{sD+3}], s40 offen offset:{p*64}")
        A4=ACC[4]
        a(f"v_cvt_pk_bf16_f32 v{A4}, v{A4}, v{A4+1}\nv_cvt_pk_bf16_f32 v{A4+1}, v{A4+2}, v{A4+3}")
        a(f"buffer_store_dwordx2 {vr(A4,2)}, v{vSt+1}, s[{sD}:{sD+3}], s40 offen offset:128")

    def build(g):
        a=g.a
        kernel_header(a,NAME)
        g.qkv(); g.attn(); g.proj()
        if g.stamp:
            a("s_waitcnt vmcnt(0)")
            g.RT(10)
        a("L_fin:")
        if g.stamp:
            a(f"""
            s_lshl_b32 s52, s2, 3
            s_add_u32 s52, s52, s{sWave}
            s_lshl_b32 s52, s52, 6
            s_add_u32 s52, s52, {64<<20}
            v_mov_b32 v16, s52
            s_mov_b64 exec, 1
            global_store_dwordx4 v16, v[240:243], s[{sWS}:{sWS+1}]
            global_store_dwordx4 v16, v[244:247], s[{sWS}:{sWS+1}] offset:16
            global_store_dwordx4 v16, v[248:251], s[{sWS}:{sWS+1}] offset:32
            """)
        a("L_end:\ns_endpgm")
        t=g.tail
        t(".p2align 5\nL_tab:")
        for hf,(c,row) in enumerate(tables2.table()):
            for runs,dest,sec in row: t(".byte "+", ".join(str(x) for x in [r+16*(hf&1) for r in runs]+dest))
        t(".p2align 2")
        return a.text()+t.text(), kernel_desc(NAME, 256 if g.stamp else 200, 100)

def write(path, stamp=False, **opt):
    HEAD=open("concat_heads__mha_block__mha_block__prompt.s.ref").read().split("; Override launch")[0]
    t,d=Gen(stamp,opt).build()
    if opt.get("align") is not None:
        import align
        t,nw,nn=align.align8(t,"L_p2_np","L_p2_fin",opt["align"])
        print(path,"widened",nw,"nops",nn)
    s=HEAD+"; @launch grid=(256,1,1) block=(512,1,1) lds=163840\n"+'.amdgcn_target "amdgcn-amd-amdhsa--gfx950"\n.text\n'+t+d
    open(path,"w").write(s)

if __name__=="__main__":
    write("k4.s",sleep=1); write("k4_st.s",stamp=True,sleep=1)
```
